```python
import torch

def _softmax(x, axis=-1):
    return torch.softmax(x, dim=axis)

def _gelu(x):
    return torch.nn.functional.gelu(x, approximate='tanh')

def _silu(x):
    return torch.nn.functional.silu(x)

def _sigmoid(x):
    return torch.sigmoid(x)

def _layernorm(x, axis=-1, eps=1e-05):
    m = x.mean(dim=axis, keepdim=True)
    v = x.var(dim=axis, keepdim=True, unbiased=False)
    return (x - m) / torch.sqrt(v + eps)

def _scatter_add(tgt, idx, src, axis=0):
    return tgt.clone().index_add_(axis, idx, src)

def _segment_sum(src, seg, n):
    out = torch.zeros((n,) + src.shape[1:], dtype=src.dtype)
    return out.index_add_(0, seg, src)

def _pad(x, pw):
    flat = tuple((v for pair in reversed(pw) for v in pair))
    return torch.nn.functional.pad(x, flat)
kernel_name = 'standalone__tree_speculative_verify_tree_attention_over_candidate_token_tree__sampling'

def setup_inputs():

    _w = lambda a: (lambda t: t.to(torch.bfloat16) if t.is_floating_point() else t)(torch.as_tensor(a))
    B, Hq, Hkv, T, C, D = (8, 32, 16, 4, 8192, 128)
    tree_mask = torch.zeros((B, T, T), dtype=float)
    for b in range(B):
        parent = torch.zeros(T, dtype=torch.int64)
        for i in range(1, T):
            parent[i] = int(torch.randint(0, i, (1,)).item())
        for i in range(T):
            j = i
            tree_mask[b, i, j] = 1.0
            while j > 0:
                j = parent[j]
                tree_mask[b, i, j] = 1.0
    return {'q': _w((lambda *s: torch.randn(*s, dtype=torch.bfloat16) * 0.8)(B, Hq, T, D)), 'k_cache': _w((lambda *s: torch.randn(*s, dtype=torch.bfloat16) * 0.8)(B, Hkv, C, D)), 'v_cache': _w((lambda *s: torch.randn(*s, dtype=torch.bfloat16) * 0.05)(B, Hkv, C, D)), 'k_tree': _w((lambda *s: torch.randn(*s, dtype=torch.bfloat16) * 0.8)(B, Hkv, T, D)), 'v_tree': _w((lambda *s: torch.randn(*s, dtype=torch.bfloat16) * 0.05)(B, Hkv, T, D)), 'tree_mask': _w(tree_mask)}

def reference(q, k_cache, v_cache, k_tree, v_tree, tree_mask):
    B, Hq, T, D = q.shape
    Hkv, C = (k_cache.shape[1], k_cache.shape[2])
    rep = Hq // Hkv
    kc = (lambda x, n, axis: torch.repeat_interleave(x, n, dim=axis))(k_cache, rep, axis=1)
    vc = (lambda x, n, axis: torch.repeat_interleave(x, n, dim=axis))(v_cache, rep, axis=1)
    kt = (lambda x, n, axis: torch.repeat_interleave(x, n, dim=axis))(k_tree, rep, axis=1)
    vt = (lambda x, n, axis: torch.repeat_interleave(x, n, dim=axis))(v_tree, rep, axis=1)
    k = torch.concatenate([kc, kt], axis=2)
    v = torch.concatenate([vc, vt], axis=2)
    scale = D ** (-0.5)
    scores = torch.einsum('bhqd,bhkd->bhqk', q, k) * scale
    ctx_mask = torch.ones((B, 1, T, C), dtype=scores.dtype)
    tm = tree_mask[:, None, :, :].clone()
    full_mask = torch.concatenate([ctx_mask, tm], axis=-1)
    scores = scores + (1.0 - full_mask) * -1000000000.0
    p = _softmax(scores, axis=-1)
    return torch.einsum('bhqk,bhkd->bhqd', p, v)
```

```python
import sys, struct, math
NAME="standalone__tree_speculative_verify_tree_attention_over_candidate_token_tree__sampling"
NS=int(sys.argv[1]) if len(sys.argv)>1 else 4
KW=8192//(NS*4)
NT=KW//32
assert NT%2==0 and NT>=4
C=(128**-0.5)*math.log2(math.e)
def f32(x): return "0x%08x"%struct.unpack('<I',struct.pack('<f',x))[0]
o=[]
def e(s): o.append(s)
hdr=open('cdna_kernels/%s.s.ref'%NAME).read().split('\n')
for l in hdr[:10]: e(l)
e("; @launch kernel=attn_part_kernel grid=(%d,1,1) block=(256,1,1) lds=65536"%(128*NS))
e("; @launch kernel=attn_comb_kernel grid=(256,1,1) block=(256,1,1) lds=0")
e('.amdgcn_target "amdgcn-amd-amdhsa--gfx950"')
e('.text')
e(".globl attn_part_kernel\n.p2align 8\n.type attn_part_kernel,@function\nattn_part_kernel:")
KA=0+8; KB=KA+32; Q=KB+32; O=Q+16; S=O+32; P=S+8; VF=P+4;
vK=VF+8; vK2=vK+1; vV=vK2+1; vT=vV+1;
vM=vT+5; vL=vM+1; vt0=vL+1; vt1=vt0+1; vt2=vt1+1; vt3=vt2+1; vAl=vt3+1
NV=vAl+1
e("s_cmp_ge_u32 s2, %d\ns_cbranch_scc1 A_done"%(128*NS))
e("s_load_dwordx4 s[4:7], s[0:1], 0")
e("s_load_dwordx2 s[24:25], s[0:1], 16")
e("s_load_dwordx2 s[26:27], s[0:1], 64")
e("v_lshrrev_b32 v1, 6, v0\ns_nop 0\nv_readfirstlane_b32 s28, v1")
e("v_and_b32 v2, 63, v0")
e("v_and_b32 v3, 15, v2")
e("v_lshrrev_b32 v4, 4, v2")
e("s_lshr_b32 s29, s2, %d"%int(math.log2(NS)))
e("s_and_b32 s30, s2, %d"%(NS-1))
e("s_waitcnt lgkmcnt(0)")
e("s_mov_b32 s16, s4\ns_mov_b32 s17, s5\ns_mov_b32 s18, 0x40000\ns_mov_b32 s19, 0x00020000")
e("s_mov_b32 s8, s6\ns_mov_b32 s9, s7\ns_mov_b32 s10, 0x10000000\ns_mov_b32 s11, 0x00020000")
e("s_mov_b32 s12, s24\ns_mov_b32 s13, s25\ns_mov_b32 s14, 0x10000000\ns_mov_b32 s15, 0x00020000")
e("s_mov_b32 s20, s26\ns_mov_b32 s21, s27\ns_mov_b32 s22, 0x1000000\ns_mov_b32 s23, 0x00020000")
e("s_lshl_b32 s31, s29, 21")
e("s_mul_i32 s32, s30, %d"%(8192//NS*256))
e("s_add_u32 s31, s31, s32")
e("s_mul_i32 s32, s28, %d"%(KW*256))
e("s_add_u32 s31, s31, s32")
e("s_lshl_b32 s33, s28, 14")
e("v_and_b32 v5, 7, v2\nv_lshlrev_b32 v5, 8, v5\nv_lshl_add_u32 v5, v4, 4, v5")
e("s_lshl_b32 s32, s29, 11")
for j in range(4): e("buffer_load_dwordx4 v[%d:%d], v5, s[16:19], s32 offen offset:%d"%(Q+4*j,Q+4*j+3,64*j))
e("v_lshlrev_b32 v%d, 8, v3\nv_lshl_add_u32 v%d, v4, 4, v%d"%(vK,vK,vK))
e("v_add_u32 v%d, 0x1000, v%d"%(vK2,vK))
e("v_lshlrev_b32 v5, 1, v4\nv_xor_b32 v5, v3, v5\nv_lshlrev_b32 v5, 4, v5\nv_lshl_add_u32 v%d, v4, 8, v5"%vV)
e("v_lshrrev_b32 v5, 2, v3\nv_and_b32 v6, 3, v3")
e("v_lshl_add_u32 v7, v4, 2, v5\nv_lshlrev_b32 v7, 8, v7")
e("v_lshlrev_b32 v1, 3, v6")
e("v_add3_u32 v7, v7, v1, s33")
for b in range(4):
    e("v_xor_b32 v1, %d, v5\nv_lshl_add_u32 v%d, v1, 5, v7"%(b,vT+b))
for i in range(32): e("v_mov_b32 v%d, 0"%(O+i))
e("v_mov_b32 v%d, %s\nv_mov_b32 v%d, 0"%(vM,f32(-3e38),vL))
e("s_mov_b32 s40, %s"%f32(C))
def loads(KR,buf):
    for s in range(2):
        for j in range(4):
            e("buffer_load_dwordx4 v[%d:%d], v%d, s[8:11], s31 offen offset:%d"%(KR+16*s+4*j,KR+16*s+4*j+3,vK2 if s else vK,64*j))
    for h in range(2):
        e("s_add_u32 s34, s33, %d\ns_mov_b32 m0, s34"%(buf*8192+h*4096))
        e("s_add_u32 s35, s31, %d"%(h*4096))
        for i in range(4):
            e("buffer_load_dwordx4 v%d, s[12:15], s35 offen offset:%d lds"%(vV,1024*i))
    e("s_add_u32 s31, s31, 8192")
def compute(KR,buf,pend):
    e("s_waitcnt vmcnt(%d)"%(pend+8))
    for s in range(2):
        for j in range(4):
            e("v_mfma_f32_16x16x32_bf16 v[%d:%d], v[%d:%d], v[%d:%d], %s"%(S+4*s,S+4*s+3,KR+16*s+4*j,KR+16*s+4*j+3,Q+4*j,Q+4*j+3,"0" if j==0 else "v[%d:%d]"%(S+4*s,S+4*s+3)))
    e("s_nop 7")
    e("v_max3_f32 v%d, v%d, v%d, v%d"%(vt0,S,S+1,S+2))
    e("v_max3_f32 v%d, v%d, v%d, v%d"%(vt1,S+3,S+4,S+5))
    e("v_max3_f32 v%d, v%d, v%d, v%d"%(vt0,vt0,S+6,S+7))
    e("v_max_f32 v%d, v%d, v%d"%(vt0,vt0,vt1))
    e("v_mov_b32 v%d, v%d\ns_nop 1\nv_permlane32_swap_b32 v%d, v%d"%(vt1,vt0,vt0,vt1))
    e("v_max_f32 v%d, v%d, v%d"%(vt0,vt0,vt1))
    e("v_mov_b32 v%d, v%d\ns_nop 1\nv_permlane16_swap_b32 v%d, v%d"%(vt1,vt0,vt0,vt1))
    e("v_max3_f32 v%d, v%d, v%d, v%d"%(vt0,vt0,vt1,vM))
    e("v_sub_f32 v%d, v%d, v%d\nv_mul_f32 v%d, s40, v%d\nv_exp_f32 v%d, v%d"%(vAl,vM,vt0,vAl,vAl,vAl,vAl))
    e("v_cmp_gt_f32 vcc, v%d, v%d"%(vt0,vM))
    e("v_mov_b32 v%d, v%d"%(vM,vt0))
    e("v_mul_f32 v%d, s40, v%d"%(vt1,vt0))
    for i in range(8):
        e("v_fma_f32 v%d, v%d, s40, -v%d"%(S+i,S+i,vt1))
    for i in range(8):
        e("v_exp_f32 v%d, v%d"%(S+i,S+i))
    e("s_cbranch_vccz 1f")
    for i in range(32): e("v_mul_f32 v%d, v%d, v%d"%(O+i,O+i,vAl))
    e("v_mul_f32 v%d, v%d, v%d"%(vL,vL,vAl))
    e("1:")
    e("v_add_f32 v%d, v%d, v%d\nv_add_f32 v%d, v%d, v%d\nv_add_f32 v%d, v%d, v%d\nv_add_f32 v%d, v%d, v%d"%(vt0,S,S+1,vt1,S+2,S+3,vt2,S+4,S+5,vt3,S+6,S+7))
    for i in range(4): e("v_cvt_pk_bf16_f32 v%d, v%d, v%d"%(P+i,S+2*i,S+2*i+1))
    e("v_add_f32 v%d, v%d, v%d\nv_add_f32 v%d, v%d, v%d\nv_add_f32 v%d, v%d, v%d\nv_add_f32 v%d, v%d, v%d"%(vt0,vt0,vt1,vt2,vt2,vt3,vL,vL,vt0,vL,vL,vt2))
    e("s_waitcnt vmcnt(%d)"%pend)
    for db in range(8):
        a,b=db>>2,db&3
        f=VF+4*(db&1)
        for s in range(2):
            e("ds_read_b64_tr_b16 v[%d:%d], v%d offset:%d"%(f+2*s,f+2*s+1,vT+b,buf*8192+s*4096+a*128))
        if db>0:
            pf=VF+4*((db-1)&1)
            e("s_waitcnt lgkmcnt(2)")
            e("v_mfma_f32_16x16x32_bf16 v[%d:%d], v[%d:%d], v[%d:%d], v[%d:%d]"%(O+4*(db-1),O+4*(db-1)+3,pf,pf+3,P,P+3,O+4*(db-1),O+4*(db-1)+3))
    e("s_waitcnt lgkmcnt(0)")
    e("v_mfma_f32_16x16x32_bf16 v[%d:%d], v[%d:%d], v[%d:%d], v[%d:%d]"%(O+28,O+31,VF+4,VF+7,P,P+3,O+28,O+31))
loads(KA,0)
e("s_mov_b32 s36, %d"%(NT//2-1))
e("A_loop:")
loads(KB,1); compute(KA,0,16)
loads(KA,0); compute(KB,1,16)
e("s_sub_u32 s36, s36, 1\ns_cmp_lg_u32 s36, 0\ns_cbranch_scc1 A_loop")
loads(KB,1); compute(KA,0,16)
compute(KB,1,0)
e("v_mov_b32 v%d, v%d\ns_nop 1\nv_permlane32_swap_b32 v%d, v%d\nv_add_f32 v%d, v%d, v%d"%(vt1,vL,vL,vt1,vL,vL,vt1))
e("v_mov_b32 v%d, v%d\ns_nop 1\nv_permlane16_swap_b32 v%d, v%d\nv_add_f32 v%d, v%d, v%d"%(vt1,vL,vL,vt1,vL,vL,vt1))
e("s_nop 7")
e("v_lshlrev_b32 v5, 9, v3\nv_lshl_add_u32 v5, v4, 4, v5\nv_add_u32 v5, s33, v5")
for db in range(8): e("ds_write_b128 v5, v[%d:%d] offset:%d"%(O+4*db,O+4*db+3,db*64))
e("v_lshl_add_u32 v6, v3, 3, s33")
e("ds_write_b64 v6, v[%d:%d] offset:8192"%(vM,vM+1))
e("s_waitcnt lgkmcnt(0)\ns_barrier")
e("v_lshrrev_b32 v5, 5, v0\nv_and_b32 v6, 31, v0")
e("v_lshlrev_b32 v7, 3, v5")
e("v_lshlrev_b32 v1, 9, v5\nv_lshl_add_u32 v1, v6, 4, v1")
for w in range(4):
    e("ds_read_b64 v[%d:%d], v7 offset:%d"%(8+2*w,9+2*w,w*16384+8192))
    e("ds_read_b128 v[%d:%d], v1 offset:%d"%(16+4*w,19+4*w,w*16384))
e("s_waitcnt lgkmcnt(0)")
e("v_max3_f32 v32, v8, v10, v12\nv_max_f32 v32, v32, v14")
for w in range(4):
    e("v_sub_f32 v%d, v%d, v32\nv_mul_f32 v%d, s40, v%d\nv_exp_f32 v%d, v%d"%(33+w,8+2*w,33+w,33+w,33+w,33+w))
e("s_nop 0")
e("v_mul_f32 v37, v9, v33")
for i in range(4): e("v_mul_f32 v%d, v%d, v33"%(40+i,16+i))
for w in range(1,4):
    e("v_fmac_f32 v37, v%d, v%d"%(9+2*w,33+w))
    for i in range(4): e("v_fmac_f32 v%d, v%d, v%d"%(40+i,16+4*w+i,33+w))
e("s_lshl_b32 s32, s2, 12")
e("buffer_store_dwordx4 v[40:43], v1, s[20:23], s32 offen")
e("v_mov_b32 v36, v32")
e("v_cmp_eq_u32 vcc, 0, v6\ns_and_saveexec_b64 s[38:39], vcc")
e("s_lshl_b32 s32, s2, 6\ns_add_u32 s32, s32, 0x800000")
e("buffer_store_dwordx2 v[36:37], v7, s[20:23], s32 offen")
e("A_done:\ns_endpgm")
e(".globl attn_comb_kernel\n.p2align 8\n.type attn_comb_kernel,@function\nattn_comb_kernel:")
e("s_cmp_ge_u32 s2, 256\ns_cbranch_scc1 B_done")
e("s_load_dwordx2 s[4:5], s[0:1], 0")
e("s_load_dwordx4 s[24:27], s[0:1], 24")
e("s_load_dwordx4 s[28:31], s[0:1], 40")
e("s_load_dwordx2 s[6:7], s[0:1], 64")
e("v_lshrrev_b32 v1, 6, v0\ns_nop 0\nv_readfirstlane_b32 s3, v1")
e("v_and_b32 v2, 63, v0")
e("s_lshl_b32 s32, s2, 2\ns_add_u32 s32, s32, s3")
e("s_waitcnt lgkmcnt(0)")
e("s_mov_b32 s8, s4\ns_mov_b32 s9, s5\ns_mov_b32 s10, 0x40000\ns_mov_b32 s11, 0x00020000")
e("s_mov_b32 s12, s24\ns_mov_b32 s13, s25\ns_mov_b32 s14, 0x20000\ns_mov_b32 s15, 0x00020000")
e("s_mov_b32 s16, s26\ns_mov_b32 s17, s27\ns_mov_b32 s18, 0x20000\ns_mov_b32 s19, 0x00020000")
e("s_mov_b32 s20, s6\ns_mov_b32 s21, s7\ns_mov_b32 s22, 0x1000000\ns_mov_b32 s23, 0x00020000")
e("s_mov_b32 s44, s28\ns_mov_b32 s45, s29\ns_mov_b32 s46, 256\ns_mov_b32 s47, 0x00020000")
e("s_mov_b32 s48, s30\ns_mov_b32 s49, s31\ns_mov_b32 s50, 0x40000\ns_mov_b32 s51, 0x00020000")
e("s_lshr_b32 s33, s32, 3")
e("s_and_b32 s34, s32, 7")
e("s_and_b32 s35, s32, 3")
e("s_lshr_b32 s36, s32, 7")
e("v_lshlrev_b32 v3, 2, v2")
e("s_lshl_b32 s37, s32, 8")
e("buffer_load_dword v4, v3, s[8:11], s37 offen")
e("s_lshl_b32 s37, s33, 10")
for j in range(4):
    e("buffer_load_dword v%d, v3, s[12:15], s37 offen offset:%d"%(5+j,256*j))
    e("buffer_load_dword v%d, v3, s[16:19], s37 offen offset:%d"%(9+j,256*j))
e("s_lshl_b32 s37, s36, 5\ns_lshl_b32 s38, s35, 3\ns_add_u32 s37, s37, s38\nv_mov_b32 v13, 0")
e("buffer_load_dwordx2 v[14:15], v13, s[44:47], s37 offen")
e("v_lshlrev_b32 v16, 3, v2")
e("s_lshl_b32 s38, s34, 9")
for i in range(NS):
    e("s_mul_i32 s37, s33, %d\ns_add_u32 s37, s37, %d\ns_add_u32 s37, s37, s38"%(NS*4096,i*4096))
    e("buffer_load_dwordx2 v[%d:%d], v16, s[20:23], s37 offen"%(20+2*i,21+2*i))
    e("s_mul_i32 s37, s33, %d\ns_add_u32 s37, s37, %d\ns_lshl_b32 s39, s34, 3\ns_add_u32 s37, s37, s39"%(NS*64,0x800000+i*64))
    e("buffer_load_dwordx2 v[%d:%d], v13, s[20:23], s37 offen"%(40+2*i,41+2*i))
e("s_waitcnt vmcnt(%d)"%(2*NS))
e("v_lshlrev_b32 v60, 16, v4\nv_and_b32 v61, 0xffff0000, v4")
for j in range(4):
    e("v_lshlrev_b32 v62, 16, v%d\nv_and_b32 v63, 0xffff0000, v%d\nv_mul_f32 v%d, v60, v62\nv_fmac_f32 v%d, v61, v63"%(5+j,5+j,64+j,64+j))
for ctl in ["quad_perm:[1,0,3,2]","quad_perm:[2,3,0,1]","row_half_mirror","row_mirror"]:
    e("s_nop 1")
    for j in range(4): e("v_add_f32_dpp v%d, v%d, v%d %s row_mask:0xf bank_mask:0xf"%(64+j,64+j,64+j,ctl))
for sw in ["v_permlane32_swap_b32","v_permlane16_swap_b32"]:
    for j in range(4): e("v_mov_b32 v%d, v%d"%(68+j,64+j))
    e("s_nop 1")
    for j in range(4): e("%s v%d, v%d"%(sw,64+j,68+j))
    for j in range(4): e("v_add_f32 v%d, v%d, v%d"%(64+j,64+j,68+j))
e("s_mov_b32 s40, %s\ns_mov_b32 s41, %s\ns_mov_b32 s42, %s"%(f32(C),f32(-1e9),f32(math.log2(math.e))))
e("v_lshlrev_b32 v68, 16, v14\nv_and_b32 v69, 0xffff0000, v14\nv_lshlrev_b32 v70, 16, v15\nv_and_b32 v71, 0xffff0000, v15")
for j in range(4):
    e("v_sub_f32 v%d, 1.0, v%d\nv_mul_f32 v%d, s41, v%d\nv_mul_f32 v%d, s42, v%d\nv_fmac_f32 v%d, s40, v%d"%(68+j,68+j,68+j,68+j,68+j,68+j,68+j,64+j))
e("s_waitcnt vmcnt(0)")
for i in range(NS): e("v_mul_f32 v%d, s40, v%d"%(40+2*i,40+2*i))
e("v_max3_f32 v72, v68, v69, v70\nv_max_f32 v72, v72, v71")
for i in range(NS): e("v_max_f32 v72, v72, v%d"%(40+2*i))
e("v_mov_b32 v73, 0\nv_mov_b32 v74, 0\nv_mov_b32 v75, 0")
for i in range(NS):
    e("v_sub_f32 v%d, v%d, v72\nv_exp_f32 v%d, v%d\ns_nop 0"%(40+2*i,40+2*i,40+2*i,40+2*i))
    e("v_fmac_f32 v73, v%d, v%d\nv_fmac_f32 v74, v%d, v%d\nv_fmac_f32 v75, v%d, v%d"%(40+2*i,41+2*i,40+2*i,20+2*i,40+2*i,21+2*i))
for j in range(4):
    e("v_sub_f32 v%d, v%d, v72\nv_exp_f32 v%d, v%d\ns_nop 0"%(68+j,68+j,68+j,68+j))
    e("v_lshlrev_b32 v62, 16, v%d\nv_and_b32 v63, 0xffff0000, v%d"%(9+j,9+j))
    e("v_add_f32 v73, v73, v%d\nv_fmac_f32 v74, v%d, v62\nv_fmac_f32 v75, v%d, v63"%(68+j,68+j,68+j))
e("v_rcp_f32 v73, v73\ns_nop 0\nv_mul_f32 v74, v74, v73\nv_mul_f32 v75, v75, v73\nv_cvt_pk_bf16_f32 v74, v74, v75")
e("s_lshl_b32 s37, s32, 8")
e("buffer_store_dword v74, v3, s[48:51], s37 offen")
e("B_done:\ns_endpgm")
e('.section .rodata,"a"')
for k,nv in (("attn_part_kernel",NV),("attn_comb_kernel",80)):
    e(".p2align 6\n.amdhsa_kernel %s\n  .amdhsa_next_free_vgpr %d\n  .amdhsa_next_free_sgpr 64\n  .amdhsa_accum_offset %d\n  .amdhsa_group_segment_fixed_size 0\n  .amdhsa_kernarg_size 72\n  .amdhsa_user_sgpr_count 2\n  .amdhsa_user_sgpr_kernarg_segment_ptr 1\n  .amdhsa_system_sgpr_workgroup_id_x 1\n.end_amdhsa_kernel"%(k,nv,(nv+3)//4*4))
open('cdna_kernels/%s.s'%NAME,'w').write('\n'.join(o)+'\n')
```

```python
import sys, struct, math
NAME="standalone__tree_speculative_verify_tree_attention_over_candidate_token_tree__sampling"
NS=int(sys.argv[1]) if len(sys.argv)>1 else 4
KW=8192//(NS*4)
NT=KW//32
NTF=' nt' if len(sys.argv)>2 and sys.argv[2]=='nt' else ''
OUT=sys.argv[3] if len(sys.argv)>3 else NAME
assert NT%2==0 and NT>=4
C=(128**-0.5)*math.log2(math.e)
def f32(x): return "0x%08x"%struct.unpack('<I',struct.pack('<f',x))[0]
o=[]
def e(s): o.append(s)
hdr=open('cdna_kernels/%s.s.ref'%NAME).read().split('\n')
for l in hdr[:10]: e(l)
e("; @launch kernel=attn_part_kernel grid=(%d,1,1) block=(256,1,1) lds=65536"%(128*NS))
e("; @launch kernel=attn_comb_kernel grid=(256,1,1) block=(256,1,1) lds=0")
e('.amdgcn_target "amdgcn-amd-amdhsa--gfx950"')
e('.text')
e(".globl attn_part_kernel\n.p2align 8\n.type attn_part_kernel,@function\nattn_part_kernel:")
KA=0+8; KB=KA+32; Q=KB+32; O=Q+16; S=O+32; P=S+8; VF=P+4;
vK=VF+8; vK2=vK+1; vV=vK2+1; vT=vV+1;
vM=vT+5; vL=vM+1; vt0=vL+1; vt1=vt0+1; vt2=vt1+1; vt3=vt2+1; vAl=vt3+1
NV=vAl+1
e("s_cmp_ge_u32 s2, %d\ns_cbranch_scc1 A_done"%(128*NS))
e("s_load_dwordx4 s[4:7], s[0:1], 0")
e("s_load_dwordx2 s[24:25], s[0:1], 16")
e("s_load_dwordx2 s[26:27], s[0:1], 64")
e("v_lshrrev_b32 v1, 6, v0\ns_nop 0\nv_readfirstlane_b32 s28, v1")
e("v_and_b32 v2, 63, v0")
e("v_and_b32 v3, 15, v2")
e("v_lshrrev_b32 v4, 4, v2")
e("s_lshr_b32 s29, s2, %d"%int(math.log2(NS)))
e("s_and_b32 s30, s2, %d"%(NS-1))
e("s_waitcnt lgkmcnt(0)")
e("s_mov_b32 s16, s4\ns_mov_b32 s17, s5\ns_mov_b32 s18, 0x40000\ns_mov_b32 s19, 0x00020000")
e("s_mov_b32 s8, s6\ns_mov_b32 s9, s7\ns_mov_b32 s10, 0x10000000\ns_mov_b32 s11, 0x00020000")
e("s_mov_b32 s12, s24\ns_mov_b32 s13, s25\ns_mov_b32 s14, 0x10000000\ns_mov_b32 s15, 0x00020000")
e("s_mov_b32 s20, s26\ns_mov_b32 s21, s27\ns_mov_b32 s22, 0x1000000\ns_mov_b32 s23, 0x00020000")
e("s_lshl_b32 s31, s29, 21")
e("s_mul_i32 s32, s30, %d"%(8192//NS*256))
e("s_add_u32 s31, s31, s32")
e("s_mul_i32 s32, s28, %d"%(KW*256))
e("s_add_u32 s31, s31, s32")
e("s_lshl_b32 s33, s28, 14")
e("v_and_b32 v5, 7, v2\nv_lshlrev_b32 v5, 8, v5\nv_lshl_add_u32 v5, v4, 4, v5")
e("s_lshl_b32 s32, s29, 11")
for j in range(4): e("buffer_load_dwordx4 v[%d:%d], v5, s[16:19], s32 offen offset:%d"%(Q+4*j,Q+4*j+3,64*j))
e("v_lshlrev_b32 v%d, 8, v3\nv_lshl_add_u32 v%d, v4, 4, v%d"%(vK,vK,vK))
e("v_add_u32 v%d, 0x1000, v%d"%(vK2,vK))
e("v_lshlrev_b32 v5, 1, v4\nv_xor_b32 v5, v3, v5\nv_lshlrev_b32 v5, 4, v5\nv_lshl_add_u32 v%d, v4, 8, v5"%vV)
e("v_lshrrev_b32 v5, 2, v3\nv_and_b32 v6, 3, v3")
e("v_lshl_add_u32 v7, v4, 2, v5\nv_lshlrev_b32 v7, 8, v7")
e("v_lshlrev_b32 v1, 3, v6")
e("v_add3_u32 v7, v7, v1, s33")
for b in range(4):
    e("v_xor_b32 v1, %d, v5\nv_lshl_add_u32 v%d, v1, 5, v7"%(b,vT+b))
for i in range(32): e("v_mov_b32 v%d, 0"%(O+i))
e("v_mov_b32 v%d, %s\nv_mov_b32 v%d, 0"%(vM,f32(-3e38),vL))
e("s_mov_b32 s40, %s"%f32(C))
def loads(KR,buf):
    for s in range(2):
        for j in range(4):
            e(("buffer_load_dwordx4 v[%d:%d], v%d, s[8:11], s31 offen offset:%d"+NTF)%(KR+16*s+4*j,KR+16*s+4*j+3,vK2 if s else vK,64*j))
    for h in range(2):
        e("s_add_u32 s34, s33, %d\ns_mov_b32 m0, s34"%(buf*8192+h*4096))
        e("s_add_u32 s35, s31, %d"%(h*4096))
        for i in range(4):
            e(("buffer_load_dwordx4 v%d, s[12:15], s35 offen offset:%d"+NTF+" lds")%(vV,1024*i))
    e("s_add_u32 s31, s31, 8192")
def compute(KR,buf,pend):
    e("s_waitcnt vmcnt(%d)"%(pend+8))
    for s in range(2):
        for j in range(4):
            e("v_mfma_f32_16x16x32_bf16 v[%d:%d], v[%d:%d], v[%d:%d], %s"%(S+4*s,S+4*s+3,KR+16*s+4*j,KR+16*s+4*j+3,Q+4*j,Q+4*j+3,"0" if j==0 else "v[%d:%d]"%(S+4*s,S+4*s+3)))
    e("s_nop 7")
    e("v_max3_f32 v%d, v%d, v%d, v%d"%(vt0,S,S+1,S+2))
    e("v_max3_f32 v%d, v%d, v%d, v%d"%(vt1,S+3,S+4,S+5))
    e("v_max3_f32 v%d, v%d, v%d, v%d"%(vt0,vt0,S+6,S+7))
    e("v_max_f32 v%d, v%d, v%d"%(vt0,vt0,vt1))
    e("v_mov_b32 v%d, v%d\ns_nop 1\nv_permlane32_swap_b32 v%d, v%d"%(vt1,vt0,vt0,vt1))
    e("v_max_f32 v%d, v%d, v%d"%(vt0,vt0,vt1))
    e("v_mov_b32 v%d, v%d\ns_nop 1\nv_permlane16_swap_b32 v%d, v%d"%(vt1,vt0,vt0,vt1))
    e("v_max3_f32 v%d, v%d, v%d, v%d"%(vt0,vt0,vt1,vM))
    e("v_sub_f32 v%d, v%d, v%d\nv_mul_f32 v%d, s40, v%d\nv_exp_f32 v%d, v%d"%(vAl,vM,vt0,vAl,vAl,vAl,vAl))
    e("v_cmp_gt_f32 vcc, v%d, v%d"%(vt0,vM))
    e("v_mov_b32 v%d, v%d"%(vM,vt0))
    e("v_mul_f32 v%d, s40, v%d"%(vt1,vt0))
    for i in range(8):
        e("v_fma_f32 v%d, v%d, s40, -v%d"%(S+i,S+i,vt1))
    for i in range(8):
        e("v_exp_f32 v%d, v%d"%(S+i,S+i))
    e("s_cbranch_vccz 1f")
    for i in range(32): e("v_mul_f32 v%d, v%d, v%d"%(O+i,O+i,vAl))
    e("v_mul_f32 v%d, v%d, v%d"%(vL,vL,vAl))
    e("1:")
    e("v_add_f32 v%d, v%d, v%d\nv_add_f32 v%d, v%d, v%d\nv_add_f32 v%d, v%d, v%d\nv_add_f32 v%d, v%d, v%d"%(vt0,S,S+1,vt1,S+2,S+3,vt2,S+4,S+5,vt3,S+6,S+7))
    for i in range(4): e("v_cvt_pk_bf16_f32 v%d, v%d, v%d"%(P+i,S+2*i,S+2*i+1))
    e("v_add_f32 v%d, v%d, v%d\nv_add_f32 v%d, v%d, v%d\nv_add_f32 v%d, v%d, v%d\nv_add_f32 v%d, v%d, v%d"%(vt0,vt0,vt1,vt2,vt2,vt3,vL,vL,vt0,vL,vL,vt2))
    e("s_waitcnt vmcnt(%d)"%pend)
    for db in range(8):
        a,b=db>>2,db&3
        f=VF+4*(db&1)
        for s in range(2):
            e("ds_read_b64_tr_b16 v[%d:%d], v%d offset:%d"%(f+2*s,f+2*s+1,vT+b,buf*8192+s*4096+a*128))
        if db>0:
            pf=VF+4*((db-1)&1)
            e("s_waitcnt lgkmcnt(2)")
            e("v_mfma_f32_16x16x32_bf16 v[%d:%d], v[%d:%d], v[%d:%d], v[%d:%d]"%(O+4*(db-1),O+4*(db-1)+3,pf,pf+3,P,P+3,O+4*(db-1),O+4*(db-1)+3))
    e("s_waitcnt lgkmcnt(0)")
    e("v_mfma_f32_16x16x32_bf16 v[%d:%d], v[%d:%d], v[%d:%d], v[%d:%d]"%(O+28,O+31,VF+4,VF+7,P,P+3,O+28,O+31))
loads(KA,0)
e("s_mov_b32 s36, %d"%(NT//2-1))
e("A_loop:")
loads(KB,1); compute(KA,0,16)
loads(KA,0); compute(KB,1,16)
e("s_sub_u32 s36, s36, 1\ns_cmp_lg_u32 s36, 0\ns_cbranch_scc1 A_loop")
loads(KB,1); compute(KA,0,16)
compute(KB,1,0)
e("v_mov_b32 v%d, v%d\ns_nop 1\nv_permlane32_swap_b32 v%d, v%d\nv_add_f32 v%d, v%d, v%d"%(vt1,vL,vL,vt1,vL,vL,vt1))
e("v_mov_b32 v%d, v%d\ns_nop 1\nv_permlane16_swap_b32 v%d, v%d\nv_add_f32 v%d, v%d, v%d"%(vt1,vL,vL,vt1,vL,vL,vt1))
e("s_nop 7")
e("v_lshlrev_b32 v5, 9, v3\nv_lshl_add_u32 v5, v4, 4, v5\nv_add_u32 v5, s33, v5")
for db in range(8): e("ds_write_b128 v5, v[%d:%d] offset:%d"%(O+4*db,O+4*db+3,db*64))
e("v_lshl_add_u32 v6, v3, 3, s33")
e("ds_write_b64 v6, v[%d:%d] offset:8192"%(vM,vM+1))
e("s_waitcnt lgkmcnt(0)\ns_barrier")
e("v_lshrrev_b32 v5, 5, v0\nv_and_b32 v6, 31, v0")
e("v_lshlrev_b32 v7, 3, v5")
e("v_lshlrev_b32 v1, 9, v5\nv_lshl_add_u32 v1, v6, 4, v1")
for w in range(4):
    e("ds_read_b64 v[%d:%d], v7 offset:%d"%(8+2*w,9+2*w,w*16384+8192))
    e("ds_read_b128 v[%d:%d], v1 offset:%d"%(16+4*w,19+4*w,w*16384))
e("s_waitcnt lgkmcnt(0)")
e("v_max3_f32 v32, v8, v10, v12\nv_max_f32 v32, v32, v14")
for w in range(4):
    e("v_sub_f32 v%d, v%d, v32\nv_mul_f32 v%d, s40, v%d\nv_exp_f32 v%d, v%d"%(33+w,8+2*w,33+w,33+w,33+w,33+w))
e("s_nop 0")
e("v_mul_f32 v37, v9, v33")
for i in range(4): e("v_mul_f32 v%d, v%d, v33"%(40+i,16+i))
for w in range(1,4):
    e("v_fmac_f32 v37, v%d, v%d"%(9+2*w,33+w))
    for i in range(4): e("v_fmac_f32 v%d, v%d, v%d"%(40+i,16+4*w+i,33+w))
e("s_lshl_b32 s32, s2, 12")
e("buffer_store_dwordx4 v[40:43], v1, s[20:23], s32 offen")
e("v_mov_b32 v36, v32")
e("v_cmp_eq_u32 vcc, 0, v6\ns_and_saveexec_b64 s[38:39], vcc")
e("s_lshl_b32 s32, s2, 6\ns_add_u32 s32, s32, 0x800000")
e("buffer_store_dwordx2 v[36:37], v7, s[20:23], s32 offen")
e("A_done:\ns_endpgm")
e(".globl attn_comb_kernel\n.p2align 8\n.type attn_comb_kernel,@function\nattn_comb_kernel:")
e("s_cmp_ge_u32 s2, 256\ns_cbranch_scc1 B_done")
e("s_load_dwordx2 s[4:5], s[0:1], 0")
e("s_load_dwordx4 s[24:27], s[0:1], 24")
e("s_load_dwordx4 s[28:31], s[0:1], 40")
e("s_load_dwordx2 s[6:7], s[0:1], 64")
e("v_lshrrev_b32 v1, 6, v0\ns_nop 0\nv_readfirstlane_b32 s3, v1")
e("v_and_b32 v2, 63, v0")
e("s_lshl_b32 s32, s2, 2\ns_add_u32 s32, s32, s3")
e("s_waitcnt lgkmcnt(0)")
e("s_mov_b32 s8, s4\ns_mov_b32 s9, s5\ns_mov_b32 s10, 0x40000\ns_mov_b32 s11, 0x00020000")
e("s_mov_b32 s12, s24\ns_mov_b32 s13, s25\ns_mov_b32 s14, 0x20000\ns_mov_b32 s15, 0x00020000")
e("s_mov_b32 s16, s26\ns_mov_b32 s17, s27\ns_mov_b32 s18, 0x20000\ns_mov_b32 s19, 0x00020000")
e("s_mov_b32 s20, s6\ns_mov_b32 s21, s7\ns_mov_b32 s22, 0x1000000\ns_mov_b32 s23, 0x00020000")
e("s_mov_b32 s44, s28\ns_mov_b32 s45, s29\ns_mov_b32 s46, 256\ns_mov_b32 s47, 0x00020000")
e("s_mov_b32 s48, s30\ns_mov_b32 s49, s31\ns_mov_b32 s50, 0x40000\ns_mov_b32 s51, 0x00020000")
e("s_lshr_b32 s33, s32, 3")
e("s_and_b32 s34, s32, 7")
e("s_and_b32 s35, s32, 3")
e("s_lshr_b32 s36, s32, 7")
e("v_lshlrev_b32 v3, 2, v2")
e("s_lshl_b32 s37, s32, 8")
e("buffer_load_dword v4, v3, s[8:11], s37 offen")
e("s_lshl_b32 s37, s33, 10")
for j in range(4):
    e("buffer_load_dword v%d, v3, s[12:15], s37 offen offset:%d"%(5+j,256*j))
    e("buffer_load_dword v%d, v3, s[16:19], s37 offen offset:%d"%(9+j,256*j))
e("s_lshl_b32 s37, s36, 5\ns_lshl_b32 s38, s35, 3\ns_add_u32 s37, s37, s38\nv_mov_b32 v13, 0")
e("buffer_load_dwordx2 v[14:15], v13, s[44:47], s37 offen")
e("v_lshlrev_b32 v16, 3, v2")
e("s_lshl_b32 s38, s34, 9")
for i in range(NS):
    e("s_mul_i32 s37, s33, %d\ns_add_u32 s37, s37, %d\ns_add_u32 s37, s37, s38"%(NS*4096,i*4096))
    e("buffer_load_dwordx2 v[%d:%d], v16, s[20:23], s37 offen"%(20+2*i,21+2*i))
    e("s_mul_i32 s37, s33, %d\ns_add_u32 s37, s37, %d\ns_lshl_b32 s39, s34, 3\ns_add_u32 s37, s37, s39"%(NS*64,0x800000+i*64))
    e("buffer_load_dwordx2 v[%d:%d], v13, s[20:23], s37 offen"%(40+2*i,41+2*i))
e("s_waitcnt vmcnt(%d)"%(2*NS))
e("v_lshlrev_b32 v60, 16, v4\nv_and_b32 v61, 0xffff0000, v4")
for j in range(4):
    e("v_lshlrev_b32 v62, 16, v%d\nv_and_b32 v63, 0xffff0000, v%d\nv_mul_f32 v%d, v60, v62\nv_fmac_f32 v%d, v61, v63"%(5+j,5+j,64+j,64+j))
for ctl in ["quad_perm:[1,0,3,2]","quad_perm:[2,3,0,1]","row_half_mirror","row_mirror"]:
    e("s_nop 1")
    for j in range(4): e("v_add_f32_dpp v%d, v%d, v%d %s row_mask:0xf bank_mask:0xf"%(64+j,64+j,64+j,ctl))
for sw in ["v_permlane32_swap_b32","v_permlane16_swap_b32"]:
    for j in range(4): e("v_mov_b32 v%d, v%d"%(68+j,64+j))
    e("s_nop 1")
    for j in range(4): e("%s v%d, v%d"%(sw,64+j,68+j))
    for j in range(4): e("v_add_f32 v%d, v%d, v%d"%(64+j,64+j,68+j))
e("s_mov_b32 s40, %s\ns_mov_b32 s41, %s\ns_mov_b32 s42, %s"%(f32(C),f32(-1e9),f32(math.log2(math.e))))
e("v_lshlrev_b32 v68, 16, v14\nv_and_b32 v69, 0xffff0000, v14\nv_lshlrev_b32 v70, 16, v15\nv_and_b32 v71, 0xffff0000, v15")
for j in range(4):
    e("v_sub_f32 v%d, 1.0, v%d\nv_mul_f32 v%d, s41, v%d\nv_mul_f32 v%d, s42, v%d\nv_fmac_f32 v%d, s40, v%d"%(68+j,68+j,68+j,68+j,68+j,68+j,68+j,64+j))
e("s_waitcnt vmcnt(0)")
for i in range(NS): e("v_mul_f32 v%d, s40, v%d"%(40+2*i,40+2*i))
e("v_max3_f32 v72, v68, v69, v70\nv_max_f32 v72, v72, v71")
for i in range(NS): e("v_max_f32 v72, v72, v%d"%(40+2*i))
e("v_mov_b32 v73, 0\nv_mov_b32 v74, 0\nv_mov_b32 v75, 0")
for i in range(NS):
    e("v_sub_f32 v%d, v%d, v72\nv_exp_f32 v%d, v%d\ns_nop 0"%(40+2*i,40+2*i,40+2*i,40+2*i))
    e("v_fmac_f32 v73, v%d, v%d\nv_fmac_f32 v74, v%d, v%d\nv_fmac_f32 v75, v%d, v%d"%(40+2*i,41+2*i,40+2*i,20+2*i,40+2*i,21+2*i))
for j in range(4):
    e("v_sub_f32 v%d, v%d, v72\nv_exp_f32 v%d, v%d\ns_nop 0"%(68+j,68+j,68+j,68+j))
    e("v_lshlrev_b32 v62, 16, v%d\nv_and_b32 v63, 0xffff0000, v%d"%(9+j,9+j))
    e("v_add_f32 v73, v73, v%d\nv_fmac_f32 v74, v%d, v62\nv_fmac_f32 v75, v%d, v63"%(68+j,68+j,68+j))
e("v_rcp_f32 v73, v73\ns_nop 0\nv_mul_f32 v74, v74, v73\nv_mul_f32 v75, v75, v73\nv_cvt_pk_bf16_f32 v74, v74, v75")
e("s_lshl_b32 s37, s32, 8")
e("buffer_store_dword v74, v3, s[48:51], s37 offen")
e("B_done:\ns_endpgm")
e('.section .rodata,"a"')
for k,nv in (("attn_part_kernel",NV),("attn_comb_kernel",80)):
    e(".p2align 6\n.amdhsa_kernel %s\n  .amdhsa_next_free_vgpr %d\n  .amdhsa_next_free_sgpr 64\n  .amdhsa_accum_offset %d\n  .amdhsa_group_segment_fixed_size 0\n  .amdhsa_kernarg_size 72\n  .amdhsa_user_sgpr_count 2\n  .amdhsa_user_sgpr_kernarg_segment_ptr 1\n  .amdhsa_system_sgpr_workgroup_id_x 1\n.end_amdhsa_kernel"%(k,nv,(nv+3)//4*4))
open('cdna_kernels/%s.s'%OUT,'w').write('\n'.join(o)+'\n')
```

```python
import sys, struct, math
NAME="standalone__tree_speculative_verify_tree_attention_over_candidate_token_tree__sampling"
NS=int(sys.argv[1]) if len(sys.argv)>1 else 4
KW=8192//(NS*4)
NT=KW//32
NTF=' nt' if len(sys.argv)>2 and sys.argv[2]=='nt' else ''
OUT=sys.argv[3] if len(sys.argv)>3 else NAME
NB=int(sys.argv[4]) if len(sys.argv)>4 else 4
C=(128**-0.5)*math.log2(math.e)
def f32(x): return "0x%08x"%struct.unpack('<I',struct.pack('<f',x))[0]
o=[]
def e(s): o.append(s)
hdr=open('cdna_kernels/%s.s.ref'%NAME).read().split('\n')
for l in hdr[:10]: e(l)
e("; @launch kernel=attn_part_kernel grid=(%d,1,1) block=(256,1,1) lds=%d"%(128*NS,max(NB,2)*32768))
e("; @launch kernel=attn_comb_kernel grid=(256,1,1) block=(256,1,1) lds=0")
e('.amdgcn_target "amdgcn-amd-amdhsa--gfx950"')
e('.text')
e(".globl attn_part_kernel\n.p2align 8\n.type attn_part_kernel,@function\nattn_part_kernel:")
KA=0+8; Q=KA+32*NB; O=Q+16; S=O+32; P=S+8; VF=P+4;
vK=VF+8; vK2=vK+1; vV=vK2+1; vT=vV+1;
vM=vT+5; vL=vM+1; vt0=vL+1; vt1=vt0+1; vt2=vt1+1; vt3=vt2+1; vAl=vt3+1
NV=vAl+1
e("s_cmp_ge_u32 s2, %d\ns_cbranch_scc1 A_done"%(128*NS))
e("s_load_dwordx4 s[4:7], s[0:1], 0")
e("s_load_dwordx2 s[24:25], s[0:1], 16")
e("s_load_dwordx2 s[26:27], s[0:1], 64")
e("v_lshrrev_b32 v1, 6, v0\ns_nop 0\nv_readfirstlane_b32 s28, v1")
e("v_and_b32 v2, 63, v0")
e("v_and_b32 v3, 15, v2")
e("v_lshrrev_b32 v4, 4, v2")
e("s_lshr_b32 s29, s2, %d"%int(math.log2(NS)))
e("s_and_b32 s30, s2, %d"%(NS-1))
e("s_waitcnt lgkmcnt(0)")
e("s_mov_b32 s16, s4\ns_mov_b32 s17, s5\ns_mov_b32 s18, 0x40000\ns_mov_b32 s19, 0x00020000")
e("s_mov_b32 s8, s6\ns_mov_b32 s9, s7\ns_mov_b32 s10, 0x10000000\ns_mov_b32 s11, 0x00020000")
e("s_mov_b32 s12, s24\ns_mov_b32 s13, s25\ns_mov_b32 s14, 0x10000000\ns_mov_b32 s15, 0x00020000")
e("s_mov_b32 s20, s26\ns_mov_b32 s21, s27\ns_mov_b32 s22, 0x1000000\ns_mov_b32 s23, 0x00020000")
e("s_lshl_b32 s31, s29, 21")
e("s_mul_i32 s32, s30, %d"%(8192//NS*256))
e("s_add_u32 s31, s31, s32")
e("s_mul_i32 s32, s28, %d"%(KW*256))
e("s_add_u32 s31, s31, s32")
e("s_mul_i32 s33, s28, %d"%(NB*8192))
e("v_and_b32 v5, 7, v2\nv_lshlrev_b32 v5, 8, v5\nv_lshl_add_u32 v5, v4, 4, v5")
e("s_lshl_b32 s32, s29, 11")
for j in range(4): e("buffer_load_dwordx4 v[%d:%d], v5, s[16:19], s32 offen offset:%d"%(Q+4*j,Q+4*j+3,64*j))
e("v_lshlrev_b32 v%d, 8, v3\nv_lshl_add_u32 v%d, v4, 4, v%d"%(vK,vK,vK))
e("v_add_u32 v%d, 0x1000, v%d"%(vK2,vK))
e("v_lshlrev_b32 v5, 1, v4\nv_xor_b32 v5, v3, v5\nv_lshlrev_b32 v5, 4, v5\nv_lshl_add_u32 v%d, v4, 8, v5"%vV)
e("v_lshrrev_b32 v5, 2, v3\nv_and_b32 v6, 3, v3")
e("v_lshl_add_u32 v7, v4, 2, v5\nv_lshlrev_b32 v7, 8, v7")
e("v_lshlrev_b32 v1, 3, v6")
e("v_add3_u32 v7, v7, v1, s33")
for b in range(4):
    e("v_xor_b32 v1, %d, v5\nv_lshl_add_u32 v%d, v1, 5, v7"%(b,vT+b))
for i in range(32): e("v_mov_b32 v%d, 0"%(O+i))
e("v_mov_b32 v%d, %s\nv_mov_b32 v%d, 0"%(vM,f32(-3e38),vL))
e("s_mov_b32 s40, %s"%f32(C))
def loads(KR,buf):
    for s in range(2):
        for j in range(4):
            e(("buffer_load_dwordx4 v[%d:%d], v%d, s[8:11], s31 offen offset:%d"+NTF)%(KR+16*s+4*j,KR+16*s+4*j+3,vK2 if s else vK,64*j))
    for h in range(2):
        e("s_add_u32 s34, s33, %d\ns_mov_b32 m0, s34"%(buf*8192+h*4096))
        e("s_add_u32 s35, s31, %d"%(h*4096))
        for i in range(4):
            e(("buffer_load_dwordx4 v%d, s[12:15], s35 offen offset:%d"+NTF+" lds")%(vV,1024*i))
    e("s_add_u32 s31, s31, 8192")
def compute(KR,buf,pend):
    e("s_waitcnt vmcnt(%d)"%(pend+8))
    for s in range(2):
        for j in range(4):
            e("v_mfma_f32_16x16x32_bf16 v[%d:%d], v[%d:%d], v[%d:%d], %s"%(S+4*s,S+4*s+3,KR+16*s+4*j,KR+16*s+4*j+3,Q+4*j,Q+4*j+3,"0" if j==0 else "v[%d:%d]"%(S+4*s,S+4*s+3)))
    e("s_nop 7")
    e("v_max3_f32 v%d, v%d, v%d, v%d"%(vt0,S,S+1,S+2))
    e("v_max3_f32 v%d, v%d, v%d, v%d"%(vt1,S+3,S+4,S+5))
    e("v_max3_f32 v%d, v%d, v%d, v%d"%(vt0,vt0,S+6,S+7))
    e("v_max_f32 v%d, v%d, v%d"%(vt0,vt0,vt1))
    e("v_mov_b32 v%d, v%d\ns_nop 1\nv_permlane32_swap_b32 v%d, v%d"%(vt1,vt0,vt0,vt1))
    e("v_max_f32 v%d, v%d, v%d"%(vt0,vt0,vt1))
    e("v_mov_b32 v%d, v%d\ns_nop 1\nv_permlane16_swap_b32 v%d, v%d"%(vt1,vt0,vt0,vt1))
    e("v_max3_f32 v%d, v%d, v%d, v%d"%(vt0,vt0,vt1,vM))
    e("v_sub_f32 v%d, v%d, v%d\nv_mul_f32 v%d, s40, v%d\nv_exp_f32 v%d, v%d"%(vAl,vM,vt0,vAl,vAl,vAl,vAl))
    e("v_cmp_gt_f32 vcc, v%d, v%d"%(vt0,vM))
    e("v_mov_b32 v%d, v%d"%(vM,vt0))
    e("v_mul_f32 v%d, s40, v%d"%(vt1,vt0))
    for i in range(8):
        e("v_fma_f32 v%d, v%d, s40, -v%d"%(S+i,S+i,vt1))
    for i in range(8):
        e("v_exp_f32 v%d, v%d"%(S+i,S+i))
    e("s_cbranch_vccz 1f")
    for i in range(32): e("v_mul_f32 v%d, v%d, v%d"%(O+i,O+i,vAl))
    e("v_mul_f32 v%d, v%d, v%d"%(vL,vL,vAl))
    e("1:")
    e("v_add_f32 v%d, v%d, v%d\nv_add_f32 v%d, v%d, v%d\nv_add_f32 v%d, v%d, v%d\nv_add_f32 v%d, v%d, v%d"%(vt0,S,S+1,vt1,S+2,S+3,vt2,S+4,S+5,vt3,S+6,S+7))
    for i in range(4): e("v_cvt_pk_bf16_f32 v%d, v%d, v%d"%(P+i,S+2*i,S+2*i+1))
    e("v_add_f32 v%d, v%d, v%d\nv_add_f32 v%d, v%d, v%d\nv_add_f32 v%d, v%d, v%d\nv_add_f32 v%d, v%d, v%d"%(vt0,vt0,vt1,vt2,vt2,vt3,vL,vL,vt0,vL,vL,vt2))
    e("s_waitcnt vmcnt(%d)"%pend)
    for db in range(8):
        a,b=db>>2,db&3
        f=VF+4*(db&1)
        for s in range(2):
            e("ds_read_b64_tr_b16 v[%d:%d], v%d offset:%d"%(f+2*s,f+2*s+1,vT+b,buf*8192+s*4096+a*128))
        if db>0:
            pf=VF+4*((db-1)&1)
            e("s_waitcnt lgkmcnt(2)")
            e("v_mfma_f32_16x16x32_bf16 v[%d:%d], v[%d:%d], v[%d:%d], v[%d:%d]"%(O+4*(db-1),O+4*(db-1)+3,pf,pf+3,P,P+3,O+4*(db-1),O+4*(db-1)+3))
    e("s_waitcnt lgkmcnt(0)")
    e("v_mfma_f32_16x16x32_bf16 v[%d:%d], v[%d:%d], v[%d:%d], v[%d:%d]"%(O+28,O+31,VF+4,VF+7,P,P+3,O+28,O+31))
for t in range(NB-1): loads(KA+32*t,t)
nl=(NT-NB+1)//NB
e("s_mov_b32 s36, %d"%nl)
e("A_loop:")
for u in range(NB):
    loads(KA+32*((u+NB-1)%NB),(u+NB-1)%NB); compute(KA+32*u,u,16*(NB-1))
e("s_sub_u32 s36, s36, 1\ns_cmp_lg_u32 s36, 0\ns_cbranch_scc1 A_loop")
for t in range(nl*NB,NT):
    u=t%NB
    if t+NB-1<NT:
        loads(KA+32*((u+NB-1)%NB),(u+NB-1)%NB); compute(KA+32*u,u,16*(NB-1))
    else:
        compute(KA+32*u,u,16*(NT-1-t))
e("v_mov_b32 v%d, v%d\ns_nop 1\nv_permlane32_swap_b32 v%d, v%d\nv_add_f32 v%d, v%d, v%d"%(vt1,vL,vL,vt1,vL,vL,vt1))
e("v_mov_b32 v%d, v%d\ns_nop 1\nv_permlane16_swap_b32 v%d, v%d\nv_add_f32 v%d, v%d, v%d"%(vt1,vL,vL,vt1,vL,vL,vt1))
e("s_nop 7")
e("v_lshlrev_b32 v5, 9, v3\nv_lshl_add_u32 v5, v4, 4, v5\nv_add_u32 v5, s33, v5")
for db in range(8): e("ds_write_b128 v5, v[%d:%d] offset:%d"%(O+4*db,O+4*db+3,db*64))
e("v_lshl_add_u32 v6, v3, 3, s33")
e("ds_write_b64 v6, v[%d:%d] offset:8192"%(vM,vM+1))
e("s_waitcnt lgkmcnt(0)\ns_barrier")
e("v_lshrrev_b32 v5, 5, v0\nv_and_b32 v6, 31, v0")
e("v_lshlrev_b32 v7, 3, v5")
e("v_lshlrev_b32 v1, 9, v5\nv_lshl_add_u32 v1, v6, 4, v1")
e("v_add_u32 v44, %d, v7\nv_add_u32 v45, %d, v1"%(NB*16384,NB*16384))
for w in range(4):
    e("ds_read_b64 v[%d:%d], v%d offset:%d"%(8+2*w,9+2*w,7 if w<2 else 44,(w&1)*NB*8192+8192))
    e("ds_read_b128 v[%d:%d], v%d offset:%d"%(16+4*w,19+4*w,1 if w<2 else 45,(w&1)*NB*8192))
e("s_waitcnt lgkmcnt(0)")
e("v_max3_f32 v32, v8, v10, v12\nv_max_f32 v32, v32, v14")
for w in range(4):
    e("v_sub_f32 v%d, v%d, v32\nv_mul_f32 v%d, s40, v%d\nv_exp_f32 v%d, v%d"%(33+w,8+2*w,33+w,33+w,33+w,33+w))
e("s_nop 0")
e("v_mul_f32 v37, v9, v33")
for i in range(4): e("v_mul_f32 v%d, v%d, v33"%(40+i,16+i))
for w in range(1,4):
    e("v_fmac_f32 v37, v%d, v%d"%(9+2*w,33+w))
    for i in range(4): e("v_fmac_f32 v%d, v%d, v%d"%(40+i,16+4*w+i,33+w))
e("s_lshl_b32 s32, s2, 12")
e("buffer_store_dwordx4 v[40:43], v1, s[20:23], s32 offen")
e("v_mov_b32 v36, v32")
e("v_cmp_eq_u32 vcc, 0, v6\ns_and_saveexec_b64 s[38:39], vcc")
e("s_lshl_b32 s32, s2, 6\ns_add_u32 s32, s32, 0x800000")
e("buffer_store_dwordx2 v[36:37], v7, s[20:23], s32 offen")
e("A_done:\ns_endpgm")
e(".globl attn_comb_kernel\n.p2align 8\n.type attn_comb_kernel,@function\nattn_comb_kernel:")
e("s_cmp_ge_u32 s2, 256\ns_cbranch_scc1 B_done")
e("s_load_dwordx2 s[4:5], s[0:1], 0")
e("s_load_dwordx4 s[24:27], s[0:1], 24")
e("s_load_dwordx4 s[28:31], s[0:1], 40")
e("s_load_dwordx2 s[6:7], s[0:1], 64")
e("v_lshrrev_b32 v1, 6, v0\ns_nop 0\nv_readfirstlane_b32 s3, v1")
e("v_and_b32 v2, 63, v0")
e("s_lshl_b32 s32, s2, 2\ns_add_u32 s32, s32, s3")
e("s_waitcnt lgkmcnt(0)")
e("s_mov_b32 s8, s4\ns_mov_b32 s9, s5\ns_mov_b32 s10, 0x40000\ns_mov_b32 s11, 0x00020000")
e("s_mov_b32 s12, s24\ns_mov_b32 s13, s25\ns_mov_b32 s14, 0x20000\ns_mov_b32 s15, 0x00020000")
e("s_mov_b32 s16, s26\ns_mov_b32 s17, s27\ns_mov_b32 s18, 0x20000\ns_mov_b32 s19, 0x00020000")
e("s_mov_b32 s20, s6\ns_mov_b32 s21, s7\ns_mov_b32 s22, 0x1000000\ns_mov_b32 s23, 0x00020000")
e("s_mov_b32 s44, s28\ns_mov_b32 s45, s29\ns_mov_b32 s46, 256\ns_mov_b32 s47, 0x00020000")
e("s_mov_b32 s48, s30\ns_mov_b32 s49, s31\ns_mov_b32 s50, 0x40000\ns_mov_b32 s51, 0x00020000")
e("s_lshr_b32 s33, s32, 3")
e("s_and_b32 s34, s32, 7")
e("s_and_b32 s35, s32, 3")
e("s_lshr_b32 s36, s32, 7")
e("v_lshlrev_b32 v3, 2, v2")
e("s_lshl_b32 s37, s32, 8")
e("buffer_load_dword v4, v3, s[8:11], s37 offen")
e("s_lshl_b32 s37, s33, 10")
for j in range(4):
    e("buffer_load_dword v%d, v3, s[12:15], s37 offen offset:%d"%(5+j,256*j))
    e("buffer_load_dword v%d, v3, s[16:19], s37 offen offset:%d"%(9+j,256*j))
e("s_lshl_b32 s37, s36, 5\ns_lshl_b32 s38, s35, 3\ns_add_u32 s37, s37, s38\nv_mov_b32 v13, 0")
e("buffer_load_dwordx2 v[14:15], v13, s[44:47], s37 offen")
e("v_lshlrev_b32 v16, 3, v2")
e("s_lshl_b32 s38, s34, 9")
for i in range(NS):
    e("s_mul_i32 s37, s33, %d\ns_add_u32 s37, s37, %d\ns_add_u32 s37, s37, s38"%(NS*4096,i*4096))
    e("buffer_load_dwordx2 v[%d:%d], v16, s[20:23], s37 offen"%(20+2*i,21+2*i))
    e("s_mul_i32 s37, s33, %d\ns_add_u32 s37, s37, %d\ns_lshl_b32 s39, s34, 3\ns_add_u32 s37, s37, s39"%(NS*64,0x800000+i*64))
    e("buffer_load_dwordx2 v[%d:%d], v13, s[20:23], s37 offen"%(40+2*i,41+2*i))
e("s_waitcnt vmcnt(%d)"%(2*NS))
e("v_lshlrev_b32 v60, 16, v4\nv_and_b32 v61, 0xffff0000, v4")
for j in range(4):
    e("v_lshlrev_b32 v62, 16, v%d\nv_and_b32 v63, 0xffff0000, v%d\nv_mul_f32 v%d, v60, v62\nv_fmac_f32 v%d, v61, v63"%(5+j,5+j,64+j,64+j))
for ctl in ["quad_perm:[1,0,3,2]","quad_perm:[2,3,0,1]","row_half_mirror","row_mirror"]:
    e("s_nop 1")
    for j in range(4): e("v_add_f32_dpp v%d, v%d, v%d %s row_mask:0xf bank_mask:0xf"%(64+j,64+j,64+j,ctl))
for sw in ["v_permlane32_swap_b32","v_permlane16_swap_b32"]:
    for j in range(4): e("v_mov_b32 v%d, v%d"%(68+j,64+j))
    e("s_nop 1")
    for j in range(4): e("%s v%d, v%d"%(sw,64+j,68+j))
    for j in range(4): e("v_add_f32 v%d, v%d, v%d"%(64+j,64+j,68+j))
e("s_mov_b32 s40, %s\ns_mov_b32 s41, %s\ns_mov_b32 s42, %s"%(f32(C),f32(-1e9),f32(math.log2(math.e))))
e("v_lshlrev_b32 v68, 16, v14\nv_and_b32 v69, 0xffff0000, v14\nv_lshlrev_b32 v70, 16, v15\nv_and_b32 v71, 0xffff0000, v15")
for j in range(4):
    e("v_sub_f32 v%d, 1.0, v%d\nv_mul_f32 v%d, s41, v%d\nv_mul_f32 v%d, s42, v%d\nv_fmac_f32 v%d, s40, v%d"%(68+j,68+j,68+j,68+j,68+j,68+j,68+j,64+j))
e("s_waitcnt vmcnt(0)")
for i in range(NS): e("v_mul_f32 v%d, s40, v%d"%(40+2*i,40+2*i))
e("v_max3_f32 v72, v68, v69, v70\nv_max_f32 v72, v72, v71")
for i in range(NS): e("v_max_f32 v72, v72, v%d"%(40+2*i))
e("v_mov_b32 v73, 0\nv_mov_b32 v74, 0\nv_mov_b32 v75, 0")
for i in range(NS):
    e("v_sub_f32 v%d, v%d, v72\nv_exp_f32 v%d, v%d\ns_nop 0"%(40+2*i,40+2*i,40+2*i,40+2*i))
    e("v_fmac_f32 v73, v%d, v%d\nv_fmac_f32 v74, v%d, v%d\nv_fmac_f32 v75, v%d, v%d"%(40+2*i,41+2*i,40+2*i,20+2*i,40+2*i,21+2*i))
for j in range(4):
    e("v_sub_f32 v%d, v%d, v72\nv_exp_f32 v%d, v%d\ns_nop 0"%(68+j,68+j,68+j,68+j))
    e("v_lshlrev_b32 v62, 16, v%d\nv_and_b32 v63, 0xffff0000, v%d"%(9+j,9+j))
    e("v_add_f32 v73, v73, v%d\nv_fmac_f32 v74, v%d, v62\nv_fmac_f32 v75, v%d, v63"%(68+j,68+j,68+j))
e("v_rcp_f32 v73, v73\ns_nop 0\nv_mul_f32 v74, v74, v73\nv_mul_f32 v75, v75, v73\nv_cvt_pk_bf16_f32 v74, v74, v75")
e("s_lshl_b32 s37, s32, 8")
e("buffer_store_dword v74, v3, s[48:51], s37 offen")
e("B_done:\ns_endpgm")
e('.section .rodata,"a"')
for k,nv in (("attn_part_kernel",NV),("attn_comb_kernel",80)):
    e(".p2align 6\n.amdhsa_kernel %s\n  .amdhsa_next_free_vgpr %d\n  .amdhsa_next_free_sgpr 64\n  .amdhsa_accum_offset %d\n  .amdhsa_group_segment_fixed_size 0\n  .amdhsa_kernarg_size 72\n  .amdhsa_user_sgpr_count 2\n  .amdhsa_user_sgpr_kernarg_segment_ptr 1\n  .amdhsa_system_sgpr_workgroup_id_x 1\n.end_amdhsa_kernel"%(k,nv,(nv+3)//4*4))
open('cdna_kernels/%s.s'%OUT,'w').write('\n'.join(o)+'\n')
```

```python
import sys, struct, math
NAME="standalone__tree_speculative_verify_tree_attention_over_candidate_token_tree__sampling"
NS=int(sys.argv[1]) if len(sys.argv)>1 else 4
KW=8192//(NS*4)
NT=KW//32
NTF=' nt' if len(sys.argv)>2 and sys.argv[2]=='nt' else ''
OUT=sys.argv[3] if len(sys.argv)>3 else NAME
assert NT%2==0 and NT>=4
C=(128**-0.5)*math.log2(math.e)
def f32(x): return "0x%08x"%struct.unpack('<I',struct.pack('<f',x))[0]
o=[]
def e(s): o.append(s)
hdr=open('cdna_kernels/%s.s.ref'%NAME).read().split('\n')
for l in hdr[:10]: e(l)
e("; @launch kernel=attn_part_kernel grid=(%d,1,1) block=(256,1,1) lds=65536"%(128*NS))
e("; @launch kernel=attn_comb_kernel grid=(256,1,1) block=(256,1,1) lds=0")
e('.amdgcn_target "amdgcn-amd-amdhsa--gfx950"')
e('.text')
e(".globl attn_part_kernel\n.p2align 8\n.type attn_part_kernel,@function\nattn_part_kernel:")
KA=0+8; KB=KA+32; Q=KB+32; O=Q+16; S=O+32; P=S+8; VF=P+4;
vK=VF+8; vK2=vK+1; vV=vK2+1; vT=vV+1;
vM=vT+5; vL=vM+1; vt0=vL+1; vt1=vt0+1; vt2=vt1+1; vt3=vt2+1; vAl=vt3+1
NV=vAl+1
e("s_cmp_ge_u32 s2, %d\ns_cbranch_scc1 A_done"%(128*NS))
e("s_load_dwordx4 s[4:7], s[0:1], 0")
e("s_load_dwordx2 s[24:25], s[0:1], 16")
e("s_load_dwordx2 s[26:27], s[0:1], 64")
e("v_lshrrev_b32 v1, 6, v0\ns_nop 0\nv_readfirstlane_b32 s28, v1")
e("v_and_b32 v2, 63, v0")
e("v_and_b32 v3, 15, v2")
e("v_lshrrev_b32 v4, 4, v2")
e("s_lshr_b32 s29, s2, %d"%int(math.log2(NS)))
e("s_and_b32 s30, s2, %d"%(NS-1))
e("s_waitcnt lgkmcnt(0)")
e("s_mov_b32 s16, s4\ns_mov_b32 s17, s5\ns_mov_b32 s18, 0x40000\ns_mov_b32 s19, 0x00020000")
e("s_mov_b32 s8, s6\ns_mov_b32 s9, s7\ns_mov_b32 s10, 0x10000000\ns_mov_b32 s11, 0x00020000")
e("s_mov_b32 s12, s24\ns_mov_b32 s13, s25\ns_mov_b32 s14, 0x10000000\ns_mov_b32 s15, 0x00020000")
e("s_mov_b32 s20, s26\ns_mov_b32 s21, s27\ns_mov_b32 s22, 0x1000000\ns_mov_b32 s23, 0x00020000")
e("s_lshl_b32 s31, s29, 21")
e("s_mul_i32 s32, s30, %d"%(8192//NS*256))
e("s_add_u32 s31, s31, s32")
e("s_mul_i32 s32, s28, 8192")
e("s_add_u32 s31, s31, s32")
e("s_lshl_b32 s33, s28, 14")
e("v_and_b32 v5, 7, v2\nv_lshlrev_b32 v5, 8, v5\nv_lshl_add_u32 v5, v4, 4, v5")
e("s_lshl_b32 s32, s29, 11")
for j in range(4): e("buffer_load_dwordx4 v[%d:%d], v5, s[16:19], s32 offen offset:%d"%(Q+4*j,Q+4*j+3,64*j))
e("v_lshlrev_b32 v%d, 8, v3\nv_lshl_add_u32 v%d, v4, 4, v%d"%(vK,vK,vK))
e("v_add_u32 v%d, 0x1000, v%d"%(vK2,vK))
e("v_lshlrev_b32 v5, 1, v4\nv_xor_b32 v5, v3, v5\nv_lshlrev_b32 v5, 4, v5\nv_lshl_add_u32 v%d, v4, 8, v5"%vV)
e("v_lshrrev_b32 v5, 2, v3\nv_and_b32 v6, 3, v3")
e("v_lshl_add_u32 v7, v4, 2, v5\nv_lshlrev_b32 v7, 8, v7")
e("v_lshlrev_b32 v1, 3, v6")
e("v_add3_u32 v7, v7, v1, s33")
for b in range(4):
    e("v_xor_b32 v1, %d, v5\nv_lshl_add_u32 v%d, v1, 5, v7"%(b,vT+b))
for i in range(32): e("v_mov_b32 v%d, 0"%(O+i))
e("v_mov_b32 v%d, %s\nv_mov_b32 v%d, 0"%(vM,f32(-3e38),vL))
e("s_mov_b32 s40, %s"%f32(C))
def loads(KR,buf):
    for s in range(2):
        for j in range(4):
            e(("buffer_load_dwordx4 v[%d:%d], v%d, s[8:11], s31 offen offset:%d"+NTF)%(KR+16*s+4*j,KR+16*s+4*j+3,vK2 if s else vK,64*j))
    for h in range(2):
        e("s_add_u32 s34, s33, %d\ns_mov_b32 m0, s34"%(buf*8192+h*4096))
        e("s_add_u32 s35, s31, %d"%(h*4096))
        for i in range(4):
            e(("buffer_load_dwordx4 v%d, s[12:15], s35 offen offset:%d"+NTF+" lds")%(vV,1024*i))
    e("s_add_u32 s31, s31, 32768")
def compute(KR,buf,pend):
    e("s_waitcnt vmcnt(%d)"%(pend+8))
    for s in range(2):
        for j in range(4):
            e("v_mfma_f32_16x16x32_bf16 v[%d:%d], v[%d:%d], v[%d:%d], %s"%(S+4*s,S+4*s+3,KR+16*s+4*j,KR+16*s+4*j+3,Q+4*j,Q+4*j+3,"0" if j==0 else "v[%d:%d]"%(S+4*s,S+4*s+3)))
    e("s_nop 7")
    e("v_max3_f32 v%d, v%d, v%d, v%d"%(vt0,S,S+1,S+2))
    e("v_max3_f32 v%d, v%d, v%d, v%d"%(vt1,S+3,S+4,S+5))
    e("v_max3_f32 v%d, v%d, v%d, v%d"%(vt0,vt0,S+6,S+7))
    e("v_max_f32 v%d, v%d, v%d"%(vt0,vt0,vt1))
    e("v_mov_b32 v%d, v%d\ns_nop 1\nv_permlane32_swap_b32 v%d, v%d"%(vt1,vt0,vt0,vt1))
    e("v_max_f32 v%d, v%d, v%d"%(vt0,vt0,vt1))
    e("v_mov_b32 v%d, v%d\ns_nop 1\nv_permlane16_swap_b32 v%d, v%d"%(vt1,vt0,vt0,vt1))
    e("v_max3_f32 v%d, v%d, v%d, v%d"%(vt0,vt0,vt1,vM))
    e("v_sub_f32 v%d, v%d, v%d\nv_mul_f32 v%d, s40, v%d\nv_exp_f32 v%d, v%d"%(vAl,vM,vt0,vAl,vAl,vAl,vAl))
    e("v_cmp_gt_f32 vcc, v%d, v%d"%(vt0,vM))
    e("v_mov_b32 v%d, v%d"%(vM,vt0))
    e("v_mul_f32 v%d, s40, v%d"%(vt1,vt0))
    for i in range(8):
        e("v_fma_f32 v%d, v%d, s40, -v%d"%(S+i,S+i,vt1))
    for i in range(8):
        e("v_exp_f32 v%d, v%d"%(S+i,S+i))
    e("s_cbranch_vccz 1f")
    for i in range(32): e("v_mul_f32 v%d, v%d, v%d"%(O+i,O+i,vAl))
    e("v_mul_f32 v%d, v%d, v%d"%(vL,vL,vAl))
    e("1:")
    e("v_add_f32 v%d, v%d, v%d\nv_add_f32 v%d, v%d, v%d\nv_add_f32 v%d, v%d, v%d\nv_add_f32 v%d, v%d, v%d"%(vt0,S,S+1,vt1,S+2,S+3,vt2,S+4,S+5,vt3,S+6,S+7))
    for i in range(4): e("v_cvt_pk_bf16_f32 v%d, v%d, v%d"%(P+i,S+2*i,S+2*i+1))
    e("v_add_f32 v%d, v%d, v%d\nv_add_f32 v%d, v%d, v%d\nv_add_f32 v%d, v%d, v%d\nv_add_f32 v%d, v%d, v%d"%(vt0,vt0,vt1,vt2,vt2,vt3,vL,vL,vt0,vL,vL,vt2))
    e("s_waitcnt vmcnt(%d)"%pend)
    for db in range(8):
        a,b=db>>2,db&3
        f=VF+4*(db&1)
        for s in range(2):
            e("ds_read_b64_tr_b16 v[%d:%d], v%d offset:%d"%(f+2*s,f+2*s+1,vT+b,buf*8192+s*4096+a*128))
        if db>0:
            pf=VF+4*((db-1)&1)
            e("s_waitcnt lgkmcnt(2)")
            e("v_mfma_f32_16x16x32_bf16 v[%d:%d], v[%d:%d], v[%d:%d], v[%d:%d]"%(O+4*(db-1),O+4*(db-1)+3,pf,pf+3,P,P+3,O+4*(db-1),O+4*(db-1)+3))
    e("s_waitcnt lgkmcnt(0)")
    e("v_mfma_f32_16x16x32_bf16 v[%d:%d], v[%d:%d], v[%d:%d], v[%d:%d]"%(O+28,O+31,VF+4,VF+7,P,P+3,O+28,O+31))
loads(KA,0)
e("s_mov_b32 s36, %d"%(NT//2-1))
e("A_loop:")
loads(KB,1); compute(KA,0,16)
loads(KA,0); compute(KB,1,16)
e("s_sub_u32 s36, s36, 1\ns_cmp_lg_u32 s36, 0\ns_cbranch_scc1 A_loop")
loads(KB,1); compute(KA,0,16)
compute(KB,1,0)
e("v_mov_b32 v%d, v%d\ns_nop 1\nv_permlane32_swap_b32 v%d, v%d\nv_add_f32 v%d, v%d, v%d"%(vt1,vL,vL,vt1,vL,vL,vt1))
e("v_mov_b32 v%d, v%d\ns_nop 1\nv_permlane16_swap_b32 v%d, v%d\nv_add_f32 v%d, v%d, v%d"%(vt1,vL,vL,vt1,vL,vL,vt1))
e("s_nop 7")
e("v_lshlrev_b32 v5, 9, v3\nv_lshl_add_u32 v5, v4, 4, v5\nv_add_u32 v5, s33, v5")
for db in range(8): e("ds_write_b128 v5, v[%d:%d] offset:%d"%(O+4*db,O+4*db+3,db*64))
e("v_lshl_add_u32 v6, v3, 3, s33")
e("ds_write_b64 v6, v[%d:%d] offset:8192"%(vM,vM+1))
e("s_waitcnt lgkmcnt(0)\ns_barrier")
e("v_lshrrev_b32 v5, 5, v0\nv_and_b32 v6, 31, v0")
e("v_lshlrev_b32 v7, 3, v5")
e("v_lshlrev_b32 v1, 9, v5\nv_lshl_add_u32 v1, v6, 4, v1")
for w in range(4):
    e("ds_read_b64 v[%d:%d], v7 offset:%d"%(8+2*w,9+2*w,w*16384+8192))
    e("ds_read_b128 v[%d:%d], v1 offset:%d"%(16+4*w,19+4*w,w*16384))
e("s_waitcnt lgkmcnt(0)")
e("v_max3_f32 v32, v8, v10, v12\nv_max_f32 v32, v32, v14")
for w in range(4):
    e("v_sub_f32 v%d, v%d, v32\nv_mul_f32 v%d, s40, v%d\nv_exp_f32 v%d, v%d"%(33+w,8+2*w,33+w,33+w,33+w,33+w))
e("s_nop 0")
e("v_mul_f32 v37, v9, v33")
for i in range(4): e("v_mul_f32 v%d, v%d, v33"%(40+i,16+i))
for w in range(1,4):
    e("v_fmac_f32 v37, v%d, v%d"%(9+2*w,33+w))
    for i in range(4): e("v_fmac_f32 v%d, v%d, v%d"%(40+i,16+4*w+i,33+w))
e("s_lshl_b32 s32, s2, 12")
e("buffer_store_dwordx4 v[40:43], v1, s[20:23], s32 offen")
e("v_mov_b32 v36, v32")
e("v_cmp_eq_u32 vcc, 0, v6\ns_and_saveexec_b64 s[38:39], vcc")
e("s_lshl_b32 s32, s2, 6\ns_add_u32 s32, s32, 0x800000")
e("buffer_store_dwordx2 v[36:37], v7, s[20:23], s32 offen")
e("A_done:\ns_endpgm")
e(".globl attn_comb_kernel\n.p2align 8\n.type attn_comb_kernel,@function\nattn_comb_kernel:")
e("s_cmp_ge_u32 s2, 256\ns_cbranch_scc1 B_done")
e("s_load_dwordx2 s[4:5], s[0:1], 0")
e("s_load_dwordx4 s[24:27], s[0:1], 24")
e("s_load_dwordx4 s[28:31], s[0:1], 40")
e("s_load_dwordx2 s[6:7], s[0:1], 64")
e("v_lshrrev_b32 v1, 6, v0\ns_nop 0\nv_readfirstlane_b32 s3, v1")
e("v_and_b32 v2, 63, v0")
e("s_lshl_b32 s32, s2, 2\ns_add_u32 s32, s32, s3")
e("s_waitcnt lgkmcnt(0)")
e("s_mov_b32 s8, s4\ns_mov_b32 s9, s5\ns_mov_b32 s10, 0x40000\ns_mov_b32 s11, 0x00020000")
e("s_mov_b32 s12, s24\ns_mov_b32 s13, s25\ns_mov_b32 s14, 0x20000\ns_mov_b32 s15, 0x00020000")
e("s_mov_b32 s16, s26\ns_mov_b32 s17, s27\ns_mov_b32 s18, 0x20000\ns_mov_b32 s19, 0x00020000")
e("s_mov_b32 s20, s6\ns_mov_b32 s21, s7\ns_mov_b32 s22, 0x1000000\ns_mov_b32 s23, 0x00020000")
e("s_mov_b32 s44, s28\ns_mov_b32 s45, s29\ns_mov_b32 s46, 256\ns_mov_b32 s47, 0x00020000")
e("s_mov_b32 s48, s30\ns_mov_b32 s49, s31\ns_mov_b32 s50, 0x40000\ns_mov_b32 s51, 0x00020000")
e("s_lshr_b32 s33, s32, 3")
e("s_and_b32 s34, s32, 7")
e("s_and_b32 s35, s32, 3")
e("s_lshr_b32 s36, s32, 7")
e("v_lshlrev_b32 v3, 2, v2")
e("s_lshl_b32 s37, s32, 8")
e("buffer_load_dword v4, v3, s[8:11], s37 offen")
e("s_lshl_b32 s37, s33, 10")
for j in range(4):
    e("buffer_load_dword v%d, v3, s[12:15], s37 offen offset:%d"%(5+j,256*j))
    e("buffer_load_dword v%d, v3, s[16:19], s37 offen offset:%d"%(9+j,256*j))
e("s_lshl_b32 s37, s36, 5\ns_lshl_b32 s38, s35, 3\ns_add_u32 s37, s37, s38\nv_mov_b32 v13, 0")
e("buffer_load_dwordx2 v[14:15], v13, s[44:47], s37 offen")
e("v_lshlrev_b32 v16, 3, v2")
e("s_lshl_b32 s38, s34, 9")
for i in range(NS):
    e("s_mul_i32 s37, s33, %d\ns_add_u32 s37, s37, %d\ns_add_u32 s37, s37, s38"%(NS*4096,i*4096))
    e("buffer_load_dwordx2 v[%d:%d], v16, s[20:23], s37 offen"%(20+2*i,21+2*i))
    e("s_mul_i32 s37, s33, %d\ns_add_u32 s37, s37, %d\ns_lshl_b32 s39, s34, 3\ns_add_u32 s37, s37, s39"%(NS*64,0x800000+i*64))
    e("buffer_load_dwordx2 v[%d:%d], v13, s[20:23], s37 offen"%(40+2*i,41+2*i))
e("s_waitcnt vmcnt(%d)"%(2*NS))
e("v_lshlrev_b32 v60, 16, v4\nv_and_b32 v61, 0xffff0000, v4")
for j in range(4):
    e("v_lshlrev_b32 v62, 16, v%d\nv_and_b32 v63, 0xffff0000, v%d\nv_mul_f32 v%d, v60, v62\nv_fmac_f32 v%d, v61, v63"%(5+j,5+j,64+j,64+j))
for ctl in ["quad_perm:[1,0,3,2]","quad_perm:[2,3,0,1]","row_half_mirror","row_mirror"]:
    e("s_nop 1")
    for j in range(4): e("v_add_f32_dpp v%d, v%d, v%d %s row_mask:0xf bank_mask:0xf"%(64+j,64+j,64+j,ctl))
for sw in ["v_permlane32_swap_b32","v_permlane16_swap_b32"]:
    for j in range(4): e("v_mov_b32 v%d, v%d"%(68+j,64+j))
    e("s_nop 1")
    for j in range(4): e("%s v%d, v%d"%(sw,64+j,68+j))
    for j in range(4): e("v_add_f32 v%d, v%d, v%d"%(64+j,64+j,68+j))
e("s_mov_b32 s40, %s\ns_mov_b32 s41, %s\ns_mov_b32 s42, %s"%(f32(C),f32(-1e9),f32(math.log2(math.e))))
e("v_lshlrev_b32 v68, 16, v14\nv_and_b32 v69, 0xffff0000, v14\nv_lshlrev_b32 v70, 16, v15\nv_and_b32 v71, 0xffff0000, v15")
for j in range(4):
    e("v_sub_f32 v%d, 1.0, v%d\nv_mul_f32 v%d, s41, v%d\nv_mul_f32 v%d, s42, v%d\nv_fmac_f32 v%d, s40, v%d"%(68+j,68+j,68+j,68+j,68+j,68+j,68+j,64+j))
e("s_waitcnt vmcnt(0)")
for i in range(NS): e("v_mul_f32 v%d, s40, v%d"%(40+2*i,40+2*i))
e("v_max3_f32 v72, v68, v69, v70\nv_max_f32 v72, v72, v71")
for i in range(NS): e("v_max_f32 v72, v72, v%d"%(40+2*i))
e("v_mov_b32 v73, 0\nv_mov_b32 v74, 0\nv_mov_b32 v75, 0")
for i in range(NS):
    e("v_sub_f32 v%d, v%d, v72\nv_exp_f32 v%d, v%d\ns_nop 0"%(40+2*i,40+2*i,40+2*i,40+2*i))
    e("v_fmac_f32 v73, v%d, v%d\nv_fmac_f32 v74, v%d, v%d\nv_fmac_f32 v75, v%d, v%d"%(40+2*i,41+2*i,40+2*i,20+2*i,40+2*i,21+2*i))
for j in range(4):
    e("v_sub_f32 v%d, v%d, v72\nv_exp_f32 v%d, v%d\ns_nop 0"%(68+j,68+j,68+j,68+j))
    e("v_lshlrev_b32 v62, 16, v%d\nv_and_b32 v63, 0xffff0000, v%d"%(9+j,9+j))
    e("v_add_f32 v73, v73, v%d\nv_fmac_f32 v74, v%d, v62\nv_fmac_f32 v75, v%d, v63"%(68+j,68+j,68+j))
e("v_rcp_f32 v73, v73\ns_nop 0\nv_mul_f32 v74, v74, v73\nv_mul_f32 v75, v75, v73\nv_cvt_pk_bf16_f32 v74, v74, v75")
e("s_lshl_b32 s37, s32, 8")
e("buffer_store_dword v74, v3, s[48:51], s37 offen")
e("B_done:\ns_endpgm")
e('.section .rodata,"a"')
for k,nv in (("attn_part_kernel",NV),("attn_comb_kernel",80)):
    e(".p2align 6\n.amdhsa_kernel %s\n  .amdhsa_next_free_vgpr %d\n  .amdhsa_next_free_sgpr 64\n  .amdhsa_accum_offset %d\n  .amdhsa_group_segment_fixed_size 0\n  .amdhsa_kernarg_size 72\n  .amdhsa_user_sgpr_count 2\n  .amdhsa_user_sgpr_kernarg_segment_ptr 1\n  .amdhsa_system_sgpr_workgroup_id_x 1\n.end_amdhsa_kernel"%(k,nv,(nv+3)//4*4))
open('cdna_kernels/%s.s'%OUT,'w').write('\n'.join(o)+'\n')
```

```python
import sys, struct, math
NAME="standalone__tree_speculative_verify_tree_attention_over_candidate_token_tree__sampling"
NS=int(sys.argv[1]) if len(sys.argv)>1 else 4
KW=8192//(NS*4)
NT=KW//32
NTF=' nt' if len(sys.argv)>2 and sys.argv[2]=='nt' else ''
OUT=sys.argv[3] if len(sys.argv)>3 else NAME
assert NT%2==0 and NT>=4
C=(128**-0.5)*math.log2(math.e)
def f32(x): return "0x%08x"%struct.unpack('<I',struct.pack('<f',x))[0]
o=[]
def e(s): o.append(s)
hdr=open('cdna_kernels/%s.s.ref'%NAME).read().split('\n')
for l in hdr[:10]: e(l)
e("; @launch kernel=attn_part_kernel grid=(%d,1,1) block=(256,1,1) lds=65536"%(128*NS))
e("; @launch kernel=attn_comb_kernel grid=(256,1,1) block=(256,1,1) lds=0")
e('.amdgcn_target "amdgcn-amd-amdhsa--gfx950"')
e('.text')
e(".globl attn_part_kernel\n.p2align 8\n.type attn_part_kernel,@function\nattn_part_kernel:")
KA=0+8; KB=KA+32; Q=KB+32; O=Q+16; S=O+32; P=S+8; VF=P+4;
vK=VF+8; vK2=vK+1; vV=vK2+1; vT=vV+1;
vM=vT+5; vL=vM+1; vt0=vL+1; vt1=vt0+1; vt2=vt1+1; vt3=vt2+1; vAl=vt3+1
NV=vAl+1
e("s_cmp_ge_u32 s2, %d\ns_cbranch_scc1 A_done"%(128*NS))
e("s_load_dwordx4 s[4:7], s[0:1], 0")
e("s_load_dwordx2 s[24:25], s[0:1], 16")
e("s_load_dwordx2 s[26:27], s[0:1], 64")
e("v_lshrrev_b32 v1, 6, v0\ns_nop 0\nv_readfirstlane_b32 s28, v1")
e("v_and_b32 v2, 63, v0")
e("v_and_b32 v3, 15, v2")
e("v_lshrrev_b32 v4, 4, v2")
e("s_lshr_b32 s29, s2, %d"%int(math.log2(NS)))
e("s_and_b32 s30, s2, %d"%(NS-1))
e("s_waitcnt lgkmcnt(0)")
e("s_mov_b32 s16, s4\ns_mov_b32 s17, s5\ns_mov_b32 s18, 0x40000\ns_mov_b32 s19, 0x00020000")
e("s_mov_b32 s8, s6\ns_mov_b32 s9, s7\ns_mov_b32 s10, 0x10000000\ns_mov_b32 s11, 0x00020000")
e("s_mov_b32 s12, s24\ns_mov_b32 s13, s25\ns_mov_b32 s14, 0x10000000\ns_mov_b32 s15, 0x00020000")
e("s_mov_b32 s20, s26\ns_mov_b32 s21, s27\ns_mov_b32 s22, 0x1000000\ns_mov_b32 s23, 0x00020000")
e("s_lshl_b32 s31, s29, 21")
e("s_mul_i32 s32, s30, 32768")
e("s_add_u32 s31, s31, s32")
e("s_mul_i32 s32, s28, 8192")
e("s_add_u32 s31, s31, s32")
e("s_lshl_b32 s33, s28, 14")
e("v_and_b32 v5, 7, v2\nv_lshlrev_b32 v5, 8, v5\nv_lshl_add_u32 v5, v4, 4, v5")
e("s_lshl_b32 s32, s29, 11")
for j in range(4): e("buffer_load_dwordx4 v[%d:%d], v5, s[16:19], s32 offen offset:%d"%(Q+4*j,Q+4*j+3,64*j))
e("v_lshlrev_b32 v%d, 8, v3\nv_lshl_add_u32 v%d, v4, 4, v%d"%(vK,vK,vK))
e("v_add_u32 v%d, 0x1000, v%d"%(vK2,vK))
e("v_lshlrev_b32 v5, 1, v4\nv_xor_b32 v5, v3, v5\nv_lshlrev_b32 v5, 4, v5\nv_lshl_add_u32 v%d, v4, 8, v5"%vV)
e("v_lshrrev_b32 v5, 2, v3\nv_and_b32 v6, 3, v3")
e("v_lshl_add_u32 v7, v4, 2, v5\nv_lshlrev_b32 v7, 8, v7")
e("v_lshlrev_b32 v1, 3, v6")
e("v_add3_u32 v7, v7, v1, s33")
for b in range(4):
    e("v_xor_b32 v1, %d, v5\nv_lshl_add_u32 v%d, v1, 5, v7"%(b,vT+b))
for i in range(32): e("v_mov_b32 v%d, 0"%(O+i))
e("v_mov_b32 v%d, %s\nv_mov_b32 v%d, 0"%(vM,f32(-3e38),vL))
e("s_mov_b32 s40, %s"%f32(C))
def loads(KR,buf):
    for s in range(2):
        for j in range(4):
            e(("buffer_load_dwordx4 v[%d:%d], v%d, s[8:11], s31 offen offset:%d"+NTF)%(KR+16*s+4*j,KR+16*s+4*j+3,vK2 if s else vK,64*j))
    for h in range(2):
        e("s_add_u32 s34, s33, %d\ns_mov_b32 m0, s34"%(buf*8192+h*4096))
        e("s_add_u32 s35, s31, %d"%(h*4096))
        for i in range(4):
            e(("buffer_load_dwordx4 v%d, s[12:15], s35 offen offset:%d"+NTF+" lds")%(vV,1024*i))
    e("s_add_u32 s31, s31, %d"%(32768*NS))
def compute(KR,buf,pend):
    e("s_waitcnt vmcnt(%d)"%(pend+8))
    for s in range(2):
        for j in range(4):
            e("v_mfma_f32_16x16x32_bf16 v[%d:%d], v[%d:%d], v[%d:%d], %s"%(S+4*s,S+4*s+3,KR+16*s+4*j,KR+16*s+4*j+3,Q+4*j,Q+4*j+3,"0" if j==0 else "v[%d:%d]"%(S+4*s,S+4*s+3)))
    e("s_nop 7")
    e("v_max3_f32 v%d, v%d, v%d, v%d"%(vt0,S,S+1,S+2))
    e("v_max3_f32 v%d, v%d, v%d, v%d"%(vt1,S+3,S+4,S+5))
    e("v_max3_f32 v%d, v%d, v%d, v%d"%(vt0,vt0,S+6,S+7))
    e("v_max_f32 v%d, v%d, v%d"%(vt0,vt0,vt1))
    e("v_mov_b32 v%d, v%d\ns_nop 1\nv_permlane32_swap_b32 v%d, v%d"%(vt1,vt0,vt0,vt1))
    e("v_max_f32 v%d, v%d, v%d"%(vt0,vt0,vt1))
    e("v_mov_b32 v%d, v%d\ns_nop 1\nv_permlane16_swap_b32 v%d, v%d"%(vt1,vt0,vt0,vt1))
    e("v_max3_f32 v%d, v%d, v%d, v%d"%(vt0,vt0,vt1,vM))
    e("v_sub_f32 v%d, v%d, v%d\nv_mul_f32 v%d, s40, v%d\nv_exp_f32 v%d, v%d"%(vAl,vM,vt0,vAl,vAl,vAl,vAl))
    e("v_cmp_gt_f32 vcc, v%d, v%d"%(vt0,vM))
    e("v_mov_b32 v%d, v%d"%(vM,vt0))
    e("v_mul_f32 v%d, s40, v%d"%(vt1,vt0))
    for i in range(8):
        e("v_fma_f32 v%d, v%d, s40, -v%d"%(S+i,S+i,vt1))
    for i in range(8):
        e("v_exp_f32 v%d, v%d"%(S+i,S+i))
    e("s_cbranch_vccz 1f")
    for i in range(32): e("v_mul_f32 v%d, v%d, v%d"%(O+i,O+i,vAl))
    e("v_mul_f32 v%d, v%d, v%d"%(vL,vL,vAl))
    e("1:")
    e("v_add_f32 v%d, v%d, v%d\nv_add_f32 v%d, v%d, v%d\nv_add_f32 v%d, v%d, v%d\nv_add_f32 v%d, v%d, v%d"%(vt0,S,S+1,vt1,S+2,S+3,vt2,S+4,S+5,vt3,S+6,S+7))
    for i in range(4): e("v_cvt_pk_bf16_f32 v%d, v%d, v%d"%(P+i,S+2*i,S+2*i+1))
    e("v_add_f32 v%d, v%d, v%d\nv_add_f32 v%d, v%d, v%d\nv_add_f32 v%d, v%d, v%d\nv_add_f32 v%d, v%d, v%d"%(vt0,vt0,vt1,vt2,vt2,vt3,vL,vL,vt0,vL,vL,vt2))
    e("s_waitcnt vmcnt(%d)"%pend)
    for db in range(8):
        a,b=db>>2,db&3
        f=VF+4*(db&1)
        for s in range(2):
            e("ds_read_b64_tr_b16 v[%d:%d], v%d offset:%d"%(f+2*s,f+2*s+1,vT+b,buf*8192+s*4096+a*128))
        if db>0:
            pf=VF+4*((db-1)&1)
            e("s_waitcnt lgkmcnt(2)")
            e("v_mfma_f32_16x16x32_bf16 v[%d:%d], v[%d:%d], v[%d:%d], v[%d:%d]"%(O+4*(db-1),O+4*(db-1)+3,pf,pf+3,P,P+3,O+4*(db-1),O+4*(db-1)+3))
    e("s_waitcnt lgkmcnt(0)")
    e("v_mfma_f32_16x16x32_bf16 v[%d:%d], v[%d:%d], v[%d:%d], v[%d:%d]"%(O+28,O+31,VF+4,VF+7,P,P+3,O+28,O+31))
loads(KA,0)
e("s_mov_b32 s36, %d"%(NT//2-1))
e("A_loop:")
loads(KB,1); compute(KA,0,16)
loads(KA,0); compute(KB,1,16)
e("s_sub_u32 s36, s36, 1\ns_cmp_lg_u32 s36, 0\ns_cbranch_scc1 A_loop")
loads(KB,1); compute(KA,0,16)
compute(KB,1,0)
e("v_mov_b32 v%d, v%d\ns_nop 1\nv_permlane32_swap_b32 v%d, v%d\nv_add_f32 v%d, v%d, v%d"%(vt1,vL,vL,vt1,vL,vL,vt1))
e("v_mov_b32 v%d, v%d\ns_nop 1\nv_permlane16_swap_b32 v%d, v%d\nv_add_f32 v%d, v%d, v%d"%(vt1,vL,vL,vt1,vL,vL,vt1))
e("s_nop 7")
e("v_lshlrev_b32 v5, 9, v3\nv_lshl_add_u32 v5, v4, 4, v5\nv_add_u32 v5, s33, v5")
for db in range(8): e("ds_write_b128 v5, v[%d:%d] offset:%d"%(O+4*db,O+4*db+3,db*64))
e("v_lshl_add_u32 v6, v3, 3, s33")
e("ds_write_b64 v6, v[%d:%d] offset:8192"%(vM,vM+1))
e("s_waitcnt lgkmcnt(0)\ns_barrier")
e("v_lshrrev_b32 v5, 5, v0\nv_and_b32 v6, 31, v0")
e("v_lshlrev_b32 v7, 3, v5")
e("v_lshlrev_b32 v1, 9, v5\nv_lshl_add_u32 v1, v6, 4, v1")
for w in range(4):
    e("ds_read_b64 v[%d:%d], v7 offset:%d"%(8+2*w,9+2*w,w*16384+8192))
    e("ds_read_b128 v[%d:%d], v1 offset:%d"%(16+4*w,19+4*w,w*16384))
e("s_waitcnt lgkmcnt(0)")
e("v_max3_f32 v32, v8, v10, v12\nv_max_f32 v32, v32, v14")
for w in range(4):
    e("v_sub_f32 v%d, v%d, v32\nv_mul_f32 v%d, s40, v%d\nv_exp_f32 v%d, v%d"%(33+w,8+2*w,33+w,33+w,33+w,33+w))
e("s_nop 0")
e("v_mul_f32 v37, v9, v33")
for i in range(4): e("v_mul_f32 v%d, v%d, v33"%(40+i,16+i))
for w in range(1,4):
    e("v_fmac_f32 v37, v%d, v%d"%(9+2*w,33+w))
    for i in range(4): e("v_fmac_f32 v%d, v%d, v%d"%(40+i,16+4*w+i,33+w))
e("s_lshl_b32 s32, s2, 12")
e("buffer_store_dwordx4 v[40:43], v1, s[20:23], s32 offen")
e("v_mov_b32 v36, v32")
e("v_cmp_eq_u32 vcc, 0, v6\ns_and_saveexec_b64 s[38:39], vcc")
e("s_lshl_b32 s32, s2, 6\ns_add_u32 s32, s32, 0x800000")
e("buffer_store_dwordx2 v[36:37], v7, s[20:23], s32 offen")
e("A_done:\ns_endpgm")
e(".globl attn_comb_kernel\n.p2align 8\n.type attn_comb_kernel,@function\nattn_comb_kernel:")
e("s_cmp_ge_u32 s2, 256\ns_cbranch_scc1 B_done")
e("s_load_dwordx2 s[4:5], s[0:1], 0")
e("s_load_dwordx4 s[24:27], s[0:1], 24")
e("s_load_dwordx4 s[28:31], s[0:1], 40")
e("s_load_dwordx2 s[6:7], s[0:1], 64")
e("v_lshrrev_b32 v1, 6, v0\ns_nop 0\nv_readfirstlane_b32 s3, v1")
e("v_and_b32 v2, 63, v0")
e("s_lshl_b32 s32, s2, 2\ns_add_u32 s32, s32, s3")
e("s_waitcnt lgkmcnt(0)")
e("s_mov_b32 s8, s4\ns_mov_b32 s9, s5\ns_mov_b32 s10, 0x40000\ns_mov_b32 s11, 0x00020000")
e("s_mov_b32 s12, s24\ns_mov_b32 s13, s25\ns_mov_b32 s14, 0x20000\ns_mov_b32 s15, 0x00020000")
e("s_mov_b32 s16, s26\ns_mov_b32 s17, s27\ns_mov_b32 s18, 0x20000\ns_mov_b32 s19, 0x00020000")
e("s_mov_b32 s20, s6\ns_mov_b32 s21, s7\ns_mov_b32 s22, 0x1000000\ns_mov_b32 s23, 0x00020000")
e("s_mov_b32 s44, s28\ns_mov_b32 s45, s29\ns_mov_b32 s46, 256\ns_mov_b32 s47, 0x00020000")
e("s_mov_b32 s48, s30\ns_mov_b32 s49, s31\ns_mov_b32 s50, 0x40000\ns_mov_b32 s51, 0x00020000")
e("s_lshr_b32 s33, s32, 3")
e("s_and_b32 s34, s32, 7")
e("s_and_b32 s35, s32, 3")
e("s_lshr_b32 s36, s32, 7")
e("v_lshlrev_b32 v3, 2, v2")
e("s_lshl_b32 s37, s32, 8")
e("buffer_load_dword v4, v3, s[8:11], s37 offen")
e("s_lshl_b32 s37, s33, 10")
for j in range(4):
    e("buffer_load_dword v%d, v3, s[12:15], s37 offen offset:%d"%(5+j,256*j))
    e("buffer_load_dword v%d, v3, s[16:19], s37 offen offset:%d"%(9+j,256*j))
e("s_lshl_b32 s37, s36, 5\ns_lshl_b32 s38, s35, 3\ns_add_u32 s37, s37, s38\nv_mov_b32 v13, 0")
e("buffer_load_dwordx2 v[14:15], v13, s[44:47], s37 offen")
e("v_lshlrev_b32 v16, 3, v2")
e("s_lshl_b32 s38, s34, 9")
for i in range(NS):
    e("s_mul_i32 s37, s33, %d\ns_add_u32 s37, s37, %d\ns_add_u32 s37, s37, s38"%(NS*4096,i*4096))
    e("buffer_load_dwordx2 v[%d:%d], v16, s[20:23], s37 offen"%(20+2*i,21+2*i))
    e("s_mul_i32 s37, s33, %d\ns_add_u32 s37, s37, %d\ns_lshl_b32 s39, s34, 3\ns_add_u32 s37, s37, s39"%(NS*64,0x800000+i*64))
    e("buffer_load_dwordx2 v[%d:%d], v13, s[20:23], s37 offen"%(40+2*i,41+2*i))
e("s_waitcnt vmcnt(%d)"%(2*NS))
e("v_lshlrev_b32 v60, 16, v4\nv_and_b32 v61, 0xffff0000, v4")
for j in range(4):
    e("v_lshlrev_b32 v62, 16, v%d\nv_and_b32 v63, 0xffff0000, v%d\nv_mul_f32 v%d, v60, v62\nv_fmac_f32 v%d, v61, v63"%(5+j,5+j,64+j,64+j))
for ctl in ["quad_perm:[1,0,3,2]","quad_perm:[2,3,0,1]","row_half_mirror","row_mirror"]:
    e("s_nop 1")
    for j in range(4): e("v_add_f32_dpp v%d, v%d, v%d %s row_mask:0xf bank_mask:0xf"%(64+j,64+j,64+j,ctl))
for sw in ["v_permlane32_swap_b32","v_permlane16_swap_b32"]:
    for j in range(4): e("v_mov_b32 v%d, v%d"%(68+j,64+j))
    e("s_nop 1")
    for j in range(4): e("%s v%d, v%d"%(sw,64+j,68+j))
    for j in range(4): e("v_add_f32 v%d, v%d, v%d"%(64+j,64+j,68+j))
e("s_mov_b32 s40, %s\ns_mov_b32 s41, %s\ns_mov_b32 s42, %s"%(f32(C),f32(-1e9),f32(math.log2(math.e))))
e("v_lshlrev_b32 v68, 16, v14\nv_and_b32 v69, 0xffff0000, v14\nv_lshlrev_b32 v70, 16, v15\nv_and_b32 v71, 0xffff0000, v15")
for j in range(4):
    e("v_sub_f32 v%d, 1.0, v%d\nv_mul_f32 v%d, s41, v%d\nv_mul_f32 v%d, s42, v%d\nv_fmac_f32 v%d, s40, v%d"%(68+j,68+j,68+j,68+j,68+j,68+j,68+j,64+j))
e("s_waitcnt vmcnt(0)")
for i in range(NS): e("v_mul_f32 v%d, s40, v%d"%(40+2*i,40+2*i))
e("v_max3_f32 v72, v68, v69, v70\nv_max_f32 v72, v72, v71")
for i in range(NS): e("v_max_f32 v72, v72, v%d"%(40+2*i))
e("v_mov_b32 v73, 0\nv_mov_b32 v74, 0\nv_mov_b32 v75, 0")
for i in range(NS):
    e("v_sub_f32 v%d, v%d, v72\nv_exp_f32 v%d, v%d\ns_nop 0"%(40+2*i,40+2*i,40+2*i,40+2*i))
    e("v_fmac_f32 v73, v%d, v%d\nv_fmac_f32 v74, v%d, v%d\nv_fmac_f32 v75, v%d, v%d"%(40+2*i,41+2*i,40+2*i,20+2*i,40+2*i,21+2*i))
for j in range(4):
    e("v_sub_f32 v%d, v%d, v72\nv_exp_f32 v%d, v%d\ns_nop 0"%(68+j,68+j,68+j,68+j))
    e("v_lshlrev_b32 v62, 16, v%d\nv_and_b32 v63, 0xffff0000, v%d"%(9+j,9+j))
    e("v_add_f32 v73, v73, v%d\nv_fmac_f32 v74, v%d, v62\nv_fmac_f32 v75, v%d, v63"%(68+j,68+j,68+j))
e("v_rcp_f32 v73, v73\ns_nop 0\nv_mul_f32 v74, v74, v73\nv_mul_f32 v75, v75, v73\nv_cvt_pk_bf16_f32 v74, v74, v75")
e("s_lshl_b32 s37, s32, 8")
e("buffer_store_dword v74, v3, s[48:51], s37 offen")
e("B_done:\ns_endpgm")
e('.section .rodata,"a"')
for k,nv in (("attn_part_kernel",NV),("attn_comb_kernel",80)):
    e(".p2align 6\n.amdhsa_kernel %s\n  .amdhsa_next_free_vgpr %d\n  .amdhsa_next_free_sgpr 64\n  .amdhsa_accum_offset %d\n  .amdhsa_group_segment_fixed_size 0\n  .amdhsa_kernarg_size 72\n  .amdhsa_user_sgpr_count 2\n  .amdhsa_user_sgpr_kernarg_segment_ptr 1\n  .amdhsa_system_sgpr_workgroup_id_x 1\n.end_amdhsa_kernel"%(k,nv,(nv+3)//4*4))
open('cdna_kernels/%s.s'%OUT,'w').write('\n'.join(o)+'\n')
```
